```python
import torch

def _softmax(x, axis=-1):
    return torch.softmax(x, dim=axis)
def _gelu(x):
    return torch.nn.functional.gelu(x, approximate="tanh")
def _silu(x):
    return torch.nn.functional.silu(x)
def _sigmoid(x):
    return torch.sigmoid(x)
def _layernorm(x, axis=-1, eps=1e-5):
    m = x.mean(dim=axis, keepdim=True)
    v = x.var(dim=axis, keepdim=True, unbiased=False)
    return (x - m) / torch.sqrt(v + eps)
def _scatter_add(tgt, idx, src, axis=0):
    return tgt.clone().index_add_(axis, idx, src)
def _segment_sum(src, seg, n):
    out = torch.zeros((n,) + src.shape[1:], dtype=src.dtype)
    return out.index_add_(0, seg, src)
def _pad(x, pw):
    flat = tuple(v for pair in reversed(pw) for v in pair)
    return torch.nn.functional.pad(x, flat)

kernel_name = 'gated_mix__sliding_local_dilated__dense_activation_squared_relu__prompt'

def setup_inputs():

    _w = (lambda a: (lambda t: t.to(torch.bfloat16) if t.is_floating_point() else t)(torch.as_tensor(a)))
    def _A_setup():
        B, S, D = 1, 2048, 1024
        return {
            "x": _w((lambda *s: torch.randn(*s, dtype=torch.bfloat16) * 0.05)(B, S, D)),
            "wqkv": _w((lambda *s: torch.randn(*s, dtype=torch.bfloat16) * 0.8)(D, 3 * D)),
            "wo": _w((lambda *s: torch.randn(*s, dtype=torch.bfloat16) * 0.05)(D, D)),
        }
    _A_in = _A_setup()

    def _B_setup():
        B, S, D, F = 1, 2048, 1024, 3584
        return {
            "x": _w((lambda *s: torch.randn(*s, dtype=torch.bfloat16) * 0.05)(B, S, D)),
            "w1": _w((lambda *s: torch.randn(*s, dtype=torch.bfloat16) * 0.1)(D, F)),
            "b1": _w((lambda *s: torch.randn(*s, dtype=torch.bfloat16) * 0.2)(F)),
            "w2": _w((lambda *s: torch.randn(*s, dtype=torch.bfloat16) * 0.1)(F, D)),
            "b2": _w((lambda *s: torch.randn(*s, dtype=torch.bfloat16) * 0.4)(D)),
        }
    _B_in = _B_setup()

    return {
        "A_x": _A_in["x"],
        "A_wqkv": _A_in["wqkv"],
        "A_wo": _A_in["wo"],
        "B_x": _B_in["x"],
        "B_w1": _B_in["w1"],
        "B_b1": _B_in["b1"],
        "B_w2": _B_in["w2"],
        "B_b2": _B_in["b2"],
        "gate_w": _w((lambda *s: torch.randn(*s, dtype=torch.bfloat16) * 0.05)(1024) * 16.0),
    }

def reference(A_x, A_wqkv, A_wo, B_x, B_w1, B_b1, B_w2, B_b2, gate_w):
    def _A_ref(x, wqkv, wo):
        B, S, D = x.shape
        H = 32; Dh = D // H
        W, dil = 8, 2
        qkv = (lambda x, *d: x.permute(*d))((x @ wqkv).reshape(B, S, 3, H, Dh), 2, 0, 3, 1, 4)
        q, k, v = qkv[0], qkv[1], qkv[2]
        scale = Dh ** -0.5
        pos = torch.arange(S)
        off = torch.arange(W) * dil
        idx = pos[:, None] - off[None, :]
        mask = idx >= 0
        idx_c = torch.where(mask, idx, 0).reshape(-1)
        kg = k[:, :, idx_c, :].reshape(B, H, S, W, Dh)
        vg = v[:, :, idx_c, :].reshape(B, H, S, W, Dh)
        logits = torch.einsum("bhsd,bhswd->bhsw", q, kg) * scale
        logits = torch.where(mask[None, None, :, :], logits, -1e9)
        attn = _softmax(logits, axis=-1)
        o = torch.einsum("bhsw,bhswd->bhsd", attn, vg)
        return (lambda x, *d: x.permute(*d))(o, 0, 2, 1, 3).reshape(B, S, D) @ wo

    def _B_ref(x, w1, b1, w2, b2):
        h = torch.einsum("bsd,df->bsf", x, w1) + b1
        zero = torch.zeros_like(h)
        r = torch.where(h > zero, h, zero)
        h = r * r
        out = torch.einsum("bsf,fd->bsd", h, w2) + b2
        return out

    x = A_x
    g = _sigmoid((x * gate_w).sum(-1, keepdims=True))
    a = _A_ref(x, A_wqkv, A_wo)
    b = _B_ref(x, B_w1, B_b1, B_w2, B_b2)
    return g * a + (1 - g) * b
```

```python
import re

TRANS = ("v_exp_f32", "v_log_f32", "v_rcp_f32", "v_rsq_f32", "v_sqrt_f32", "v_sin_f32", "v_cos_f32", "v_rcp_iflag_f32")

def regs_of(tok):
    tok = tok.strip()
    neg = tok.lstrip("-").replace("abs(", "").replace(")", "").replace("|", "")
    m = re.fullmatch(r"([vas])(\d+)", neg)
    if m:
        return {(m.group(1), int(m.group(2)))}
    m = re.fullmatch(r"([vas])\[(\d+):(\d+)\]", neg)
    if m:
        return {(m.group(1), i) for i in range(int(m.group(2)), int(m.group(3)) + 1)}
    if neg == "vcc":
        return {("s", "vcc")}
    if neg == "m0":
        return {("s", "m0")}
    if neg == "exec":
        return {("s", "exec")}
    return set()

def split_ops(rest):
    out = []; depth = 0; cur = ""
    for ch in rest:
        if ch == "[": depth += 1
        if ch == "]": depth -= 1
        if ch == "," and depth == 0:
            out.append(cur.strip()); cur = ""
        else:
            cur += ch
    if cur.strip(): out.append(cur.strip())
    return out

class Ins:
    __slots__ = ("text", "op", "kind", "w", "r", "srcC", "ab", "states", "sw", "store_wide", "dpp", "lds_dma", "mask_r")
    def __init__(self, text):
        self.text = text
        t = text.split(";")[0].strip()
        self.w = set(); self.r = set(); self.srcC = set(); self.ab = set(); self.sw = set()
        self.states = 1; self.kind = "other"; self.store_wide = False; self.dpp = False; self.lds_dma = False; self.mask_r = set()
        if not t or t.endswith(":") or t.startswith("."):
            self.kind = "none"; self.states = 0; self.op = ""; return
        parts = t.split(None, 1)
        self.op = op = parts[0]
        rest = parts[1] if len(parts) > 1 else ""
        ops = split_ops(rest)
        if ops:
            last = ops[-1].split()
            mods = last[1:]
            ops[-1] = last[0] if last else ""
        else:
            mods = []
        R = [regs_of(o) for o in ops]
        if op == "s_nop":
            self.kind = "nop"; self.states = int(ops[0], 0) + 1; return
        if op.startswith("v_mfma"):
            self.kind = "mfma"
            self.w = R[0]; self.ab = R[1] | R[2]; self.srcC = R[3]; self.r = self.ab | self.srcC
            return
        if op.startswith("v_"):
            self.kind = "valu"
            base = op.replace("_e32", "").replace("_e64", "").replace("_dpp", "")
            self.dpp = any(m.startswith("row_") or m.startswith("quad_perm") for m in mods) or op.endswith("_dpp")
            if base.startswith("v_cmp"):
                self.sw = R[0]; self.r = set().union(*R[1:])
            elif base in ("v_readfirstlane_b32", "v_readlane_b32"):
                self.sw = R[0]; self.r = set().union(*R[1:]); self.kind = "valu_rl"
            elif base.startswith("v_permlane"):
                self.w = R[0] | R[1]; self.r = R[0] | R[1]; self.kind = "valu_perm"
            else:
                self.w = {x for x in R[0]}
                self.r = set().union(*R[1:]) if len(R) > 1 else set()
                if base in ("v_fmac_f32", "v_dot2c_f32_bf16", "v_pk_fmac_f32") or self.dpp:
                    self.r |= R[0]
                if base in ("v_add_co_u32", "v_addc_co_u32"):
                    self.sw = R[1]; self.r = set().union(*R[2:])
                if base == "v_cndmask_b32":
                    if len(R) == 4: self.mask_r = R[3]
                    else: self.mask_r = {("s", "vcc")}
                if base in TRANS: self.kind = "trans"
            return
        if op.startswith("ds_"):
            self.kind = "ds"
            if op.startswith("ds_read") or op.startswith("ds_bpermute") or op.startswith("ds_swizzle"):
                self.w = R[0]; self.r = set().union(*R[1:]) if len(R) > 1 else set()
            else:
                self.r = set().union(*R)
            return
        if op.startswith("buffer_") or op.startswith("global_"):
            self.kind = "vmem"
            if "lds" in mods:
                self.lds_dma = True; self.r = set().union(*R)
            elif "load" in op:
                self.w = R[0]; self.r = set().union(*R[1:])
            else:
                self.r = set().union(*R)
                if "dwordx4" in op or "dwordx3" in op:
                    self.store_wide = True; self.w = set(); self.srcC = R[0]
            return
        if op.startswith("s_"):
            self.kind = "salu"
            if op in ("s_waitcnt", "s_barrier", "s_sleep", "s_setprio", "s_endpgm") or op.startswith("s_cbranch") or op == "s_branch":
                return
            if op.startswith("s_cmp"):
                self.r = set().union(*R); return
            if R:
                self.w = R[0]; self.r = set().union(*R[1:]) if len(R) > 1 else set()
            return

def vregs(s):
    return {x for x in s if x[0] in "va"}
def sregs(s):
    return {x for x in s if x[0] == "s"}

def need(prod, cons):
    n = 0
    pv = vregs(prod.w)
    if prod.kind in ("valu", "trans", "valu_perm"):
        if cons.kind == "mfma" and pv & cons.r: n = max(n, 2)
        if cons.kind == "valu_perm" and pv & cons.r: n = max(n, 2)
        if cons.dpp and pv & cons.r: n = max(n, 2)
        if cons.kind == "valu_rl" and pv & cons.r: n = max(n, 1)
        if prod.kind == "trans" and cons.kind in ("valu", "valu_perm", "valu_rl") and pv & cons.r: n = max(n, 1)
    if prod.kind in ("valu", "valu_rl") and prod.sw:
        if cons.kind in ("valu", "trans", "valu_perm", "valu_rl") and (prod.sw & (sregs(cons.r) | cons.mask_r)): n = max(n, 2)
        if cons.kind == "vmem" and (prod.sw & cons.r): n = max(n, 5)
        if cons.kind == "salu" and (prod.sw & cons.r): n = max(n, 1)
    if prod.op.startswith("v_dot2") and pv & (cons.r | cons.w):
        if cons.op != prod.op: n = max(n, 3)
    if prod.kind == "mfma":
        d = prod.w
        if cons.kind in ("valu", "trans", "valu_perm", "valu_rl") and d & (cons.r | cons.w): n = max(n, 8)
        if cons.kind in ("vmem", "ds") and d & (cons.r | cons.w): n = max(n, 8)
        if cons.kind == "mfma":
            if d & cons.ab: n = max(n, 8)
            if d & cons.srcC and d != cons.srcC: n = max(n, 6)
            if d & cons.w and d != cons.srcC and d != cons.w: n = max(n, 6)
        if cons.kind in ("valu", "trans", "valu_perm") and (vregs(prod.srcC) & cons.w): n = max(n, 3)
    if prod.kind == "vmem" and prod.store_wide:
        if cons.kind in ("valu", "trans", "valu_perm", "mfma") and (vregs(prod.srcC) & cons.w): n = max(n, 2)
        if cons.kind in ("ds", "vmem") and (vregs(prod.srcC) & cons.w): n = max(n, 1)
    if prod.kind == "salu" and ("s", "m0") in prod.w and cons.lds_dma: n = max(n, 1)
    return n

def fix_hazards(lines, insert=True):
    out = []
    hist = []
    pos = 0
    cnt = 0
    for ln in lines:
        ins = Ins(ln)
        if ins.kind == "none":
            out.append(ln); continue
        req = 0
        for p, ppos in reversed(hist):
            dist = pos - ppos - 1
            if dist > 24: break
            nd = need(p, ins)
            if nd > dist: req = max(req, nd - dist)
        if req > 0:
            cnt += 1
            if insert:
                out.append(f"s_nop {req-1}")
                pos += req
            else:
                out.append(f"; HAZARD need {req}")
        out.append(ln)
        hist.append((ins, pos))
        pos += ins.states
        if ins.kind == "nop":
            pass
        if len(hist) > 64: hist = hist[-40:]
    return out, cnt

class Prog:
    def __init__(self):
        self.L = []
    def __call__(self, s):
        for ln in s.split("\n"):
            ln = ln.strip()
            if ln: self.L.append(ln)
    def ext(self, lst):
        for x in lst: self(x)
    def text(self):
        return "\n".join(self.L) + "\n"

def interleave(mf, items, start=0.0):
    items = sorted(items, key=lambda t: t[0])
    out = []; pos = 0; n = len(mf)
    while pos < len(items) and items[pos][0] <= 0.0:
        out.extend(items[pos][1]); pos += 1
    for i, m in enumerate(mf):
        out.append(m)
        while pos < len(items) and items[pos][0] <= (i + 1) / n + 1e-9:
            out.extend(items[pos][1]); pos += 1
    while pos < len(items):
        out.extend(items[pos][1]); pos += 1
    return out

def spread(lst, a, b):
    n = len(lst)
    return [(a + (b - a) * (i + 0.5) / n, x if isinstance(x, list) else [x]) for i, x in enumerate(lst)] if n else []
```

```python
from asmlib import *

ACT_MB = 288 * 4096
G_OFF = 0x1200000
FLAG_OFF = 0x1204000
P1_OFF = 0x1210000
WS_USED = P1_OFF + 128 * 65536

KA = dict(Ax=0, wqkv=8, wo=16, Bx=24, w1=32, b1=40, w2=48, b2=56, gw=64, out=72, dbg=80, ws=88)

sX, sW, sWS, sM = 8, 12, 16, 20
s_w, s_mh, s_nh, s_rb, s_ct = 28, 29, 30, 31, 32
s_it = 33
sMB = [34, 35, 36, 37]
sKb, sKB, sKa, sKA0, sKA1, sKH = 38, 39, 40, 41, 42, 43
sMA, sMA1, sMH = 44, 45, 46
sRd, sDel, sDelH, sT0, sT1, sRow = 47, 48, 49, 50, 51, 52
sAw, sHw = 53, 54
sSel = [56, 58, 60, 62]
sP, sPb, sPh = 64, 65, 66
sC = 67
vLane = 0
vOA = [1, 2, 3, 4]
vOB = [5, 6, 7]
vOH = 8
vXa = [9, 10]
vWa = [11, 12]
vWh = 13
def aX(sig, T): return sig * 40 + T * 4
def aW(sig, p): return 80 + sig * 28 + p * 4

def srd(p, s, lo, hi, size, bias=0):
    if bias:
        p(f"s_sub_u32 s{s}, s{lo}, {bias}")
        p(f"s_subb_u32 s{s+1}, s{hi}, 0")
    else:
        p(f"s_mov_b32 s{s}, s{lo}")
        p(f"s_mov_b32 s{s+1}, s{hi}")
    p(f"s_mov_b32 s{s+2}, {size + bias}")
    p(f"s_mov_b32 s{s+3}, 0x00020000")

class Path:
    def __init__(self, kind, mh=None, cfg=None):
        self.kind = kind
        self.mh = mh
        self.cfg = cfg or {}
        if kind == 'w1':
            self.pitch = 7168; self.S = 32768; self.Abase = 61440; self.Hbase = 49152
            self.acc0 = 32; self.np = 7
        else:
            self.pitch = 6144; self.S = 36864; self.Abase = 49152
            self.acc0 = 48; self.np = 6
    def acc(self, p, T):
        return self.acc0 + (p * 8 + T) * 4
    def accH(self, b, pp):
        return 240 + (b * 2 + pp) * 4

    def mfmas(self, sig):
        L = []
        for p in range(self.np):
            for T in range(8):
                a = self.acc(p, T); w = aW(sig, p); x = aX(sig, T)
                if self.kind == 'qkv' and p >= 4:
                    L.append(f"v_mfma_f32_16x16x32_bf16 v[{a}:{a+3}], a[{x}:{x+3}], a[{w}:{w+3}], v[{a}:{a+3}]")
                else:
                    L.append(f"v_mfma_f32_16x16x32_bf16 v[{a}:{a+3}], a[{w}:{w+3}], a[{x}:{x+3}], v[{a}:{a+3}]")
        if self.kind == 'qkv':
            for b in range(2):
                for pp in range(2):
                    a = self.accH(b, pp); x = aX(sig, 8 + pp)
                    if self.mh == 0:
                        w = aW(sig, 2 + b)
                        L.append(f"v_mfma_f32_16x16x32_bf16 v[{a}:{a+3}], a[{w}:{w+3}], a[{x}:{x+3}], v[{a}:{a+3}]")
                    else:
                        w = aW(sig, 4 + b)
                        L.append(f"v_mfma_f32_16x16x32_bf16 v[{a}:{a+3}], a[{x}:{x+3}], a[{w}:{w+3}], v[{a}:{a+3}]")
        return L

    def reads(self, sig, h, bslot):
        L = []
        for T in range(8):
            x = aX(sig, T)
            L.append(f"ds_read_b128 a[{x}:{x+3}], v{vXa[h]} offset:{T*2048}")
        if self.kind == 'qkv':
            for pp in range(2):
                x = aX(sig, 8 + pp)
                L.append(f"ds_read_b128 a[{x}:{x+3}], v{vXa[h]} offset:{32768 - 16384*self.mh + pp*2048}")
        W = []
        for p in range(6):
            cc, b = p >> 1, p & 1
            w = aW(sig, p)
            for i in range(2):
                W.append(f"ds_read_b64_tr_b16 a[{w+2*i}:{w+2*i+1}], v{vWa[b]} offset:{bslot*12288 + cc*1024 + i*512}")
        if self.kind == 'w1':
            w = aW(sig, 6)
            for i in range(2):
                W.append(f"ds_read_b64_tr_b16 a[{w+2*i}:{w+2*i+1}], v{vWh} offset:{h*2048 + i*256}")
        out = []
        items = spread(L, 0, 1) + spread(W, 0, 1)
        items.sort(key=lambda t: t[0])
        return [x[1][0] for x in items]

    def dmaB(self, u):
        return [f"buffer_load_dwordx4 v{vOB[cc]}, s[{sW}:{sW+3}], s{sKB} offen offset:{cc*1024} lds" for cc in range(3)]
    def dmaA(self, grp):
        so = sKA0 if grp == 0 else sKA1
        return [f"buffer_load_dwordx4 v{vOA[j]}, s[{sX}:{sX+3}], s{so} offen offset:{j*1024} lds" for j in range(4)]
    def dmaH(self):
        if self.kind == 'w1':
            return [f"buffer_load_dwordx4 v{vOH}, s[{sW}:{sW+3}], s{sKH} offen lds"]
        return [f"buffer_load_dwordx4 v{vOH}, s[{sX}:{sX+3}], s{sKa} offen lds"]
    def advB(self):
        return [f"s_add_u32 s{sKb}, s{sKb}, 32", f"s_and_b32 s{sKb}, s{sKb}, 1023", f"s_mul_i32 s{sKB}, s{sKb}, {self.pitch}"]
    def advA(self):
        L = [f"s_add_u32 s{sKa}, s{sKa}, 128", f"s_and_b32 s{sKa}, s{sKa}, 2047",
             f"s_add_u32 s{sKA0}, s{sKa}, s{sRow}", f"s_add_u32 s{sKA1}, s{sKA0}, 65536"]
        if self.kind == 'w1':
            L.append(f"s_mul_i32 s{sKH}, s{sKa}, {self.pitch // 2}")
        return L
    def slot_dma(self):
        L = [f"s_add_u32 s{sMA}, s{sRd}, s{sAw}", f"s_add_u32 s{sMA1}, s{sMA}, 4096"]
        if self.kind == 'w1':
            L += [f"s_lshr_b32 s{sT0}, s{sRd}, 3", f"s_add_u32 s{sMH}, s{sT0}, s{sHw}"]
        else:
            L += [f"s_add_u32 s{sMH}, s{sRd}, s{sHw}"]
        return L
    def slot_adv(self):
        S = self.S
        L = [f"s_add_u32 s{sT0}, s{sRd}, {S}", f"s_cmp_eq_u32 s{sT0}, {3*S}", f"s_cselect_b32 s{sT0}, 0, s{sT0}",
             f"s_sub_u32 s{sDel}, s{sT0}, s{sRd}", f"s_mov_b32 s{sRd}, s{sT0}"]
        V = [f"v_add_u32 v{vXa[0]}, s{sDel}, v{vXa[0]}", f"v_add_u32 v{vXa[1]}, s{sDel}, v{vXa[1]}"]
        if self.kind == 'w1':
            L.append(f"s_ashr_i32 s{sDelH}, s{sDel}, 3")
            V.append(f"v_add_u32 v{vWh}, s{sDelH}, v{vWh}")
        return L, V

    def step(self, u):
        sig = u & 1
        mf = self.mfmas(sig)
        n = len(mf)
        items = []
        rd_start = 0.0
        if u & 1:
            L, V = self.slot_adv()
            pre = self.slot_dma() + L + V
            items.append((0.0, pre[:4]))
            items += spread(pre[4:] , 0.0, 0.06)
            items += spread(self.advA(), 0.06, 0.12)
            rd_start = 0.08
        rd = self.reads(sig ^ 1, (u + 1) & 1, (u + 1) & 3)
        items += spread(rd, rd_start, 0.82)
        dm = []
        B = self.dmaB(u)
        dm.append(self.advB() + [f"s_mov_b32 m0, s{sMB[u]}"])
        dm += [[x] for x in B]
        if u & 1:
            A = self.dmaA(0)
            dm.append([f"s_mov_b32 m0, s{sMA}"]); dm += [[x] for x in A]
        else:
            A = self.dmaA(1)
            dm.append([f"s_mov_b32 m0, s{sMA1}"]); dm += [[x] for x in A]
            dm.append([f"s_mov_b32 m0, s{sMH}"]); dm += [[x] for x in self.dmaH()]
        items += spread(dm, 0.14, 0.97)
        out = interleave(mf, items)
        out.append("s_waitcnt vmcnt(15) lgkmcnt(0)")
        out.append("s_barrier")
        return out

def ids(p):
    p("v_lshrrev_b32 v1, 6, v0")
    p("v_and_b32 v0, 63, v0")
    p("s_nop 0")
    p(f"v_readfirstlane_b32 s{s_w}, v1")
    p("s_nop 3")
    p(f"s_lshr_b32 s{s_mh}, s{s_w}, 1")
    p(f"s_and_b32 s{s_nh}, s{s_w}, 1")

def setup_common(p, P, cfg):
    p("v_lshrrev_b32 v14, 3, v0")
    p("v_and_b32 v15, 7, v0")
    p("v_and_b32 v16, 6, v14")
    p("v_xor_b32 v16, v15, v16")
    p("v_lshlrev_b32 v16, 4, v16")
    p("v_lshlrev_b32 v17, 12, v14")
    p("v_add_u32 v17, v17, v16")
    p(f"s_lshl_b32 s{sT0}, s{s_w}, 17")
    p(f"v_add_u32 v17, s{sT0}, v17")
    for j in range(4):
        c = (16 * (j & 1) + (j >> 1)) * 2048 - j * 1024
        p(f"v_add_u32 v{vOA[j]}, {c}, v17")
    p(f"s_and_b32 s{sT0}, s{s_w}, 1")
    p(f"s_lshl_b32 s{sT0}, s{sT0}, 2")
    p("v_and_b32 v18, 2, v14")
    p(f"v_or_b32 v18, s{sT0}, v18")
    p("v_xor_b32 v18, v15, v18")
    p("v_lshlrev_b32 v18, 4, v18")
    p(f"s_lshl_b32 s{sT0}, s{s_w}, 3")
    p(f"v_add_u32 v19, s{sT0}, v14")
    p(f"s_mov_b32 s{sT1}, {P.pitch}")
    p(f"v_mul_lo_u32 v19, v19, s{sT1}")
    p("v_add_u32 v19, v19, v18")
    for cc in range(3):
        p(f"s_add_u32 s{sT0}, s{sPb}, {cc * P.ccstride - cc * 1024 + 4096}")
        p(f"v_add_u32 v{vOB[cc]}, s{sT0}, v19")
    p("v_and_b32 v20, 15, v0")
    p("v_lshrrev_b32 v21, 4, v0")
    p("v_and_b32 v22, 6, v20")
    p("v_xor_b32 v22, v21, v22")
    p("v_lshlrev_b32 v22, 4, v22")
    p("v_lshlrev_b32 v23, 7, v20")
    p("v_add_u32 v22, v22, v23")
    p(f"s_lshl_b32 s{sT0}, s{s_mh}, 14")
    p(f"s_add_u32 s{sT0}, s{sT0}, {P.Abase}")
    p(f"v_add_u32 v{vXa[0]}, s{sT0}, v22")
    p(f"v_xor_b32 v{vXa[1]}, 64, v{vXa[0]}")
    p("v_lshrrev_b32 v14, 2, v0")
    p("v_and_b32 v14, 3, v14")
    p("v_and_b32 v15, 3, v0")
    p("v_lshrrev_b32 v16, 1, v15")
    p("v_and_b32 v17, 2, v14")
    p("v_and_b32 v18, 1, v21")
    p("v_lshlrev_b32 v19, 2, v18")
    p("v_or_b32 v17, v17, v19")
    p("v_mul_u32_u24 v19, 3072, v21")
    p("v_lshlrev_b32 v23, 7, v14")
    p("v_add_u32 v19, v19, v23")
    p("v_and_b32 v23, 1, v15")
    p("v_lshlrev_b32 v23, 3, v23")
    p("v_add_u32 v19, v19, v23")
    for b in range(2):
        p(f"s_lshl_b32 s{sT0}, s{s_nh}, 2")
        p(f"s_add_u32 s{sT0}, s{sT0}, {2*b}")
        p(f"v_or_b32 v23, s{sT0}, v16")
        p("v_xor_b32 v23, v23, v17")
        p("v_lshlrev_b32 v23, 4, v23")
        p(f"v_add_u32 v{vWa[b]}, v19, v23")
    for u in range(4):
        p(f"s_mul_i32 s{sMB[u]}, s{s_w}, 3072")
        if u: p(f"s_add_u32 s{sMB[u]}, s{sMB[u]}, {u*12288}")
    p(f"s_lshl_b32 s{sAw}, s{s_w}, 13")
    p(f"s_add_u32 s{sAw}, s{sAw}, {P.Abase}")
    p(f"s_lshl_b32 s{sRow}, s{s_rb}, 19")

def prologue_dma(p, P, cfg):
    p(f"s_lshr_b32 s{sKb}, s{sKa}, 1")
    def setA():
        p(f"s_add_u32 s{sKA0}, s{sKa}, s{sRow}")
        p(f"s_add_u32 s{sKA1}, s{sKA0}, 65536")
        if P.kind == 'w1':
            p(f"s_mul_i32 s{sKH}, s{sKa}, {P.pitch // 2}")
    def nextA():
        p(f"s_add_u32 s{sKa}, s{sKa}, 128"); p(f"s_and_b32 s{sKa}, s{sKa}, 2047"); setA()
    def slot(k):
        p(f"s_mov_b32 s{sRd}, {k * P.S}")
        p.ext(P.slot_dma())
    def A(grp):
        p(f"s_mov_b32 m0, s{sMA if grp == 0 else sMA1}"); p("s_nop 0"); p.ext(P.dmaA(grp))
    def H():
        p(f"s_mov_b32 m0, s{sMH}"); p("s_nop 0"); p.ext(P.dmaH())
    def B(u, first=False):
        if first: p(f"s_mul_i32 s{sKB}, s{sKb}, {P.pitch}")
        else: p.ext(P.advB())
        p(f"s_mov_b32 m0, s{sMB[u]}"); p("s_nop 0"); p.ext(P.dmaB(u))
    setA(); slot(0)
    A(0); A(1); H(); B(0, True)
    B(1); nextA(); slot(1); A(0)
    B(2); A(1); H()
    B(3); nextA(); slot(2); A(0)
    p(f"s_mov_b32 s{sRd}, 0")

def main_loop(p, P, tag):
    p("s_waitcnt vmcnt(22)")
    p("s_barrier")
    p.ext(P.reads(0, 0, 0))
    p("s_waitcnt vmcnt(15) lgkmcnt(0)")
    p("s_barrier")
    p(f"s_mov_b32 s{s_it}, 0")
    p(f"L_loop_{tag}:")
    p(f"s_cmp_eq_u32 s{s_it}, 7")
    p(f"s_cselect_b32 s{sX+2}, 0, s{sX+2}")
    p(f"s_cselect_b32 s{sW+2}, 0, s{sW+2}")
    for u in range(4):
        p.ext(P.step(u))
    p(f"s_add_u32 s{s_it}, s{s_it}, 1")
    p(f"s_cmp_lt_u32 s{s_it}, 8")
    p(f"s_cbranch_scc1 L_loop_{tag}")
    p("s_waitcnt vmcnt(0)")
    p("s_barrier")


def gen_w1(p, cfg):
    P = Path('w1', cfg=cfg); P.ccstride = 128
    p("L_w1:")
    p(f"s_load_dwordx2 s[4:5], s[0:1], {KA['Ax']}")
    p(f"s_load_dwordx2 s[6:7], s[0:1], {KA['w1']}")
    p(f"s_load_dwordx2 s[24:25], s[0:1], {KA['b1']}")
    p(f"s_load_dwordx2 s[26:27], s[0:1], {KA['ws']}")
    p(f"s_mul_i32 s{sT0}, s{s_ct}, 224")
    p(f"s_and_b32 s{sT1}, s{s_ct}, 1")
    p(f"s_lshl_b32 s68, s{sT1}, 5")
    p(f"s_add_u32 s68, s68, s{sT0}")
    p(f"s_cmp_eq_u32 s{sT1}, 1")
    p(f"s_cselect_b32 s69, 0, 192")
    p(f"s_add_u32 s69, s69, s{sT0}")
    p(f"s_lshl_b32 s{sPb}, s68, 1")
    p("s_waitcnt lgkmcnt(0)")
    srd(p, sX, 4, 5, 0x400000)
    srd(p, sW, 6, 7, 7340032, bias=4096)
    srd(p, sWS, 26, 27, WS_USED)
    srd(p, sM, 24, 25, 7168)
    setup_common(p, P, cfg)
    p("v_lshrrev_b32 v25, 2, v0")
    p("v_and_b32 v26, 3, v0")
    p("v_lshrrev_b32 v27, 3, v25")
    p("v_lshlrev_b32 v27, 1, v27")
    p("v_xor_b32 v26, v26, v27")
    p("v_lshlrev_b32 v26, 4, v26")
    p(f"s_lshl_b32 s{sT0}, s{s_w}, 4")
    p(f"v_add_u32 v25, s{sT0}, v25")
    p(f"s_mov_b32 s{sT1}, {P.pitch}")
    p(f"v_mul_lo_u32 v25, v25, s{sT1}")
    p("v_add_u32 v25, v25, v26")
    p(f"s_lshl_b32 s{sT0}, s69, 1")
    p(f"s_add_u32 s{sT0}, s{sT0}, 4096")
    p(f"v_add_u32 v{vOH}, s{sT0}, v25")
    p("v_lshrrev_b32 v25, 1, v21")
    p("v_lshlrev_b32 v25, 10, v25")
    p("v_lshlrev_b32 v26, 3, v18")
    p("v_add_u32 v26, v26, v14")
    p("v_lshlrev_b32 v26, 6, v26")
    p("v_add_u32 v25, v25, v26")
    p(f"s_lshl_b32 s{sT0}, s{s_nh}, 1")
    p(f"v_or_b32 v26, s{sT0}, v16")
    p("v_lshlrev_b32 v27, 1, v18")
    p("v_xor_b32 v26, v26, v27")
    p("v_lshlrev_b32 v26, 4, v26")
    p("v_add_u32 v25, v25, v26")
    p("v_and_b32 v26, 1, v15")
    p("v_lshlrev_b32 v26, 3, v26")
    p("v_add_u32 v25, v25, v26")
    p(f"v_add_u32 v{vWh}, {P.Hbase}, v25")
    p(f"s_lshl_b32 s{sHw}, s{s_w}, 10")
    p(f"s_add_u32 s{sHw}, s{sHw}, {P.Hbase}")
    p("v_lshlrev_b32 v31, 3, v21")
    p(f"s_lshl_b32 s{sT0}, s{s_nh}, 6")
    p(f"s_add_u32 s{sT0}, s{sT0}, s{sPb}")
    for pp in range(6):
        cc, b = pp >> 1, pp & 1
        p(f"buffer_load_dwordx2 v[{14+2*pp}:{15+2*pp}], v31, s[{sM}:{sM+3}], s{sT0} offen offset:{cc*128 + b*32}")
    p(f"s_lshl_b32 s{sT1}, s{s_nh}, 5")
    p(f"s_lshl_b32 s{sT0}, s69, 1")
    p(f"s_add_u32 s{sT1}, s{sT1}, s{sT0}")
    p(f"buffer_load_dwordx2 v[26:27], v31, s[{sM}:{sM+3}], s{sT1} offen")
    p.ext(cfg['k0w1'])
    prologue_dma(p, P, cfg)
    p("s_waitcnt vmcnt(34)")
    for pp in range(7):
        src = 14 + 2 * pp
        p(f"v_lshlrev_b32 v28, 16, v{src}")
        p(f"v_and_b32 v29, 0xffff0000, v{src}")
        p(f"v_lshlrev_b32 v30, 16, v{src+1}")
        p(f"v_and_b32 v31, 0xffff0000, v{src+1}")
        for T in range(8):
            a = P.acc(pp, T)
            p(f"v_mov_b64 v[{a}:{a+1}], v[28:29]")
            p(f"v_mov_b64 v[{a+2}:{a+3}], v[30:31]")
    main_loop(p, P, "w1")
    p(f"s_lshl_b32 s{sT0}, s{s_rb}, 1")
    p(f"s_add_u32 s{sT0}, s{sT0}, s{s_mh}")
    p(f"s_mul_i32 s{sT0}, s{sT0}, {ACT_MB}")
    p(f"s_lshr_b32 s{sT1}, s68, 4")
    p(f"s_lshl_b32 s70, s{s_nh}, 1")
    p(f"s_add_u32 s{sT1}, s{sT1}, s70")
    p(f"s_add_u32 s{sT1}, s{sT1}, 64")
    p(f"s_lshl_b32 s{sT1}, s{sT1}, 12")
    p(f"s_add_u32 s{sPb}, s{sT0}, s{sT1}")
    p(f"s_lshr_b32 s{sT1}, s69, 4")
    p(f"s_add_u32 s{sT1}, s{sT1}, s{s_nh}")
    p(f"s_add_u32 s{sT1}, s{sT1}, 64")
    p(f"s_lshl_b32 s{sT1}, s{sT1}, 12")
    p(f"s_add_u32 s{sPh}, s{sT0}, s{sT1}")
    p("v_lshlrev_b32 v1, 4, v0")
    k = 0
    for pp in range(7):
        if pp < 6:
            cc, b = pp >> 1, pp & 1
            p(f"s_add_u32 s{sP}, s{sPb}, {(4*cc + b) * 4096}")
        else:
            p(f"s_mov_b32 s{sP}, s{sPh}")
        for R in range(4):
            t = 14 + 4 * (k % 4); k += 1
            a0 = P.acc(pp, 2 * R); a1 = P.acc(pp, 2 * R + 1)
            for a in (a0, a1):
                for r in range(4): p(f"v_max_f32 v{a+r}, 0, v{a+r}")
            for a in (a0, a1):
                p(f"v_pk_mul_f32 v[{a}:{a+1}], v[{a}:{a+1}], v[{a}:{a+1}]")
                p(f"v_pk_mul_f32 v[{a+2}:{a+3}], v[{a+2}:{a+3}], v[{a+2}:{a+3}]")
            p(f"v_cvt_pk_bf16_f32 v{t}, v{a0}, v{a0+1}")
            p(f"v_cvt_pk_bf16_f32 v{t+1}, v{a0+2}, v{a0+3}")
            p(f"v_cvt_pk_bf16_f32 v{t+2}, v{a1}, v{a1+1}")
            p(f"v_cvt_pk_bf16_f32 v{t+3}, v{a1+2}, v{a1+3}")
            p(f"v_permlane16_swap_b32 v{t}, v{t+2}")
            p(f"v_permlane16_swap_b32 v{t+1}, v{t+3}")
            p(f"buffer_store_dwordx4 v[{t}:{t+3}], v1, s[{sWS}:{sWS+3}], s{sP} offen offset:{R*1024}")
    p("s_branch L_k1_end")

def gen_qkv(p, cfg):
    P0 = Path('qkv', mh=0, cfg=cfg); P0.ccstride = 2048
    p("L_qkv:")
    p(f"s_load_dwordx2 s[4:5], s[0:1], {KA['Ax']}")
    p(f"s_load_dwordx2 s[6:7], s[0:1], {KA['wqkv']}")
    p(f"s_load_dwordx2 s[24:25], s[0:1], {KA['gw']}")
    p(f"s_load_dwordx2 s[26:27], s[0:1], {KA['ws']}")
    p(f"s_lshl_b32 s{sPb}, s{s_ct}, 7")
    p("s_waitcnt lgkmcnt(0)")
    srd(p, sX, 4, 5, 0x400000)
    srd(p, sW, 6, 7, 6291456, bias=4096)
    srd(p, sWS, 26, 27, WS_USED)
    srd(p, sM, 24, 25, 2048)
    setup_common(p, P0, cfg)
    p("v_lshrrev_b32 v25, 3, v0")
    p("v_and_b32 v26, 7, v0")
    p("v_and_b32 v27, 6, v25")
    p("v_xor_b32 v26, v26, v27")
    p("v_lshlrev_b32 v26, 4, v26")
    p("v_lshlrev_b32 v25, 1, v25")
    p(f"s_lshl_b32 s{sT0}, s{s_rb}, 8")
    p(f"s_lshl_b32 s{sT1}, s{s_nh}, 4")
    p(f"s_add_u32 s{sT0}, s{sT0}, s{sT1}")
    p(f"s_add_u32 s{sT0}, s{sT0}, s{s_mh}")
    p(f"s_sub_u32 s{sT0}, s{sT0}, 32")
    p(f"v_add_u32 v25, s{sT0}, v25")
    p("v_max_i32 v25, 0, v25")
    p("v_lshlrev_b32 v25, 11, v25")
    p(f"v_add_u32 v{vOH}, v25, v26")
    p(f"s_lshl_b32 s{sHw}, s{s_w}, 10")
    p(f"s_add_u32 s{sHw}, s{sHw}, {P0.Abase + 32768}")
    p.ext(cfg['k0qkv'])
    prologue_dma(p, P0, cfg)
    for a in range(48, 256, 2):
        p(f"v_mov_b64 v[{a}:{a+1}], 0")
    p(f"s_cmp_eq_u32 s{s_mh}, 1")
    p("s_cbranch_scc1 L_qkv_m1")
    for mh in range(2):
        P = Path('qkv', mh=mh, cfg=cfg); P.ccstride = 2048
        if mh == 1: p("L_qkv_m1:")
        main_loop(p, P, f"qkv{mh}")
        qkv_epilogue(p, P, cfg)
        p("s_branch L_k1_end")

def qkv_epilogue(p, P, cfg):
    mh = P.mh
    Q = lambda b, T: P.acc(b, T)
    K = lambda b, T: P.acc(2 + b, T)
    V = lambda b, T: P.acc(4 + b, T)
    Vp = lambda b, pp, idx: 8 + ((b * 2 + pp) * 5 + idx) * 2
    Kprev = lambda pp: 240 + 4 * pp
    for b in range(2):
        for T in range(8):
            I, pp = T >> 1, T & 1
            d = Vp(b, pp, I + 1); a = V(b, T)
            p(f"v_cvt_pk_bf16_f32 v{d}, v{a}, v{a+1}")
            p(f"v_cvt_pk_bf16_f32 v{d+1}, v{a+2}, v{a+3}")
    p("v_lshrrev_b32 v1, 4, v0")
    p(f"s_lshl_b32 s{sT0}, s{s_rb}, 8")
    p(f"s_lshl_b32 s{sT1}, s{s_ct}, 4")
    p(f"s_add_u32 s{sT0}, s{sT0}, s{sT1}")
    p(f"s_lshl_b32 s{sT1}, s{s_w}, 2")
    p(f"s_add_u32 s70, s{sT0}, s{sT1}")
    p(f"v_add_u32 v1, s70, v1")
    p("v_lshlrev_b32 v2, 11, v1")
    p("v_and_b32 v3, 15, v0")
    p("v_lshlrev_b32 v3, 4, v3")
    p("v_add_u32 v2, v2, v3")
    p(f"s_mov_b32 s{sX+2}, 0x400000")
    for m in range(8):
        p(f"buffer_load_dwordx4 v[{176+4*m}:{179+4*m}], v2, s[{sX}:{sX+3}], 0 offen offset:{m*256}")
    for m in range(8):
        p(f"buffer_load_dwordx4 v[{208+4*m}:{211+4*m}], v3, s[{sM}:{sM+3}], 0 offen offset:{m*256}")
    p("v_lshlrev_b32 v7, 2, v1")
    for T in range(8):
        for X in (Q, K):
            a = X(0, T); c = X(1, T)
            p(f"v_cvt_pk_bf16_f32 v{a}, v{a}, v{a+1}")
            p(f"v_cvt_pk_bf16_f32 v{a+1}, v{a+2}, v{a+3}")
            p(f"v_cvt_pk_bf16_f32 v{a+2}, v{c}, v{c+1}")
            p(f"v_cvt_pk_bf16_f32 v{a+3}, v{c+2}, v{c+3}")
    p("v_lshlrev_b32 v2, 4, v0")
    p(f"s_lshl_b32 s{sT0}, s{s_nh}, 13")
    p(f"v_add_u32 v2, s{sT0}, v2")
    p("v_lshlrev_b32 v3, 3, v0")
    p(f"v_add_u32 v3, s{sT0}, v3")
    if mh == 0:
        for pp in range(2):
            a = P.accH(0, pp); c = P.accH(1, pp)
            p(f"v_cvt_pk_bf16_f32 v{a}, v{a}, v{a+1}")
            p(f"v_cvt_pk_bf16_f32 v{a+1}, v{a+2}, v{a+3}")
            p(f"v_cvt_pk_bf16_f32 v{a+2}, v{c}, v{c+1}")
            p(f"v_cvt_pk_bf16_f32 v{a+3}, v{c+2}, v{c+3}")
        for pp in range(2):
            a = K(0, 6 + pp)
            p(f"ds_write_b128 v2, v[{a}:{a+3}] offset:{pp*1024}")
        for b in range(2):
            for pp in range(2):
                a = Vp(b, pp, 4)
                p(f"ds_write_b64 v3, v[{a}:{a+1}] offset:{2048 + (b*2+pp)*512}")
        p("s_waitcnt lgkmcnt(0)")
        p("s_barrier")
        for b in range(2):
            for pp in range(2):
                a = Vp(b, pp, 0)
                p(f"ds_read_b64 v[{a}:{a+1}], v3 offset:{4096 + (b*2+pp)*512}")
    else:
        for b in range(2):
            for pp in range(2):
                a = P.accH(b, pp)
                p(f"v_cvt_pk_bf16_f32 v{a}, v{a}, v{a+1}")
                p(f"v_cvt_pk_bf16_f32 v{a+1}, v{a+2}, v{a+3}")
                p(f"ds_write_b64 v3, v[{a}:{a+1}] offset:{4096 + (b*2+pp)*512}")
        p("s_waitcnt lgkmcnt(0)")
        p("s_barrier")
        for pp in range(2):
            a = Kprev(pp)
            p(f"ds_read_b128 v[{a}:{a+3}], v2 offset:{pp*1024}")
        for b in range(2):
            for pp in range(2):
                a = Vp(b, pp, 0)
                p(f"ds_read_b64 v[{a}:{a+1}], v3 offset:{2048 + (b*2+pp)*512}")
    vB = [248, 249, 250, 251]; vB0 = [252, 253, 254, 255]; vMp = [4, 5]; vMc = [6, 2]
    p("v_and_b32 v80, 15, v0")
    p("v_lshrrev_b32 v81, 4, v0")
    p("v_lshlrev_b32 v81, 2, v81")
    p("v_add_u32 v82, 9, v80")
    p("v_subrev_u32 v83, 7, v80")
    p(f"s_mov_b32 s{sT0}, 0xf149f2ca")
    p(f"s_cmp_eq_u32 s{s_rb}, 0")
    p(f"s_cselect_b32 s{sT1}, 1, 0")
    for r in range(4):
        p(f"v_add_u32 v84, {r}, v81")
        p(f"v_cmp_ge_i32 s[{sSel[r]}:{sSel[r]+1}], v84, v82")
        p("v_cmp_ge_i32 vcc, v84, v83")
        p("v_cmp_le_i32 s[72:73], v84, v80")
        p("s_nop 4")
        p("s_and_b64 s[72:73], s[72:73], vcc")
        p(f"s_or_b64 s[74:75], s[72:73], s[{sSel[r]}:{sSel[r]+1}]")
        p(f"v_mov_b32 v85, s{sT0}")
        p(f"v_cndmask_b32 v{vB[r]}, v85, 0, s[74:75]")
        if mh == 0:
            p(f"s_cmp_eq_u32 s{sT1}, 1")
            p("s_cselect_b64 s[74:75], s[72:73], s[74:75]")
        p(f"v_cndmask_b32 v{vB0[r]}, v85, 0, s[74:75]")
    p("v_mov_b32 v85, 0xffff")
    p("v_mov_b32 v86, 0xffff0000")
    for q in range(2):
        p(f"v_cndmask_b32 v87, 0, v85, s[{sSel[2*q]}:{sSel[2*q]+1}]")
        p(f"v_cndmask_b32 v88, 0, v86, s[{sSel[2*q+1]}:{sSel[2*q+1]+1}]")
        p(f"v_or_b32 v{vMp[q]}, v87, v88")
        p(f"v_not_b32 v{vMc[q]}, v{vMp[q]}")
    p(f"s_mov_b32 s{sC}, 0x3e8293ee")
    p(f"s_lshl_b32 s{sT0}, s{s_rb}, 1")
    p(f"s_add_u32 s{sT0}, s{sT0}, {mh}")
    p(f"s_mul_i32 s{sT0}, s{sT0}, {ACT_MB}")
    p(f"s_lshl_b32 s{sT1}, s{s_ct}, 1")
    p(f"s_add_u32 s{sT1}, s{sT1}, s{s_nh}")
    p(f"s_lshl_b32 s{sT1}, s{sT1}, 13")
    p(f"s_add_u32 s{sPb}, s{sT0}, s{sT1}")
    p(f"s_add_u32 s{sPh}, s{sPb}, 4096")
    p("v_lshlrev_b32 v1, 4, v0")
    p("s_waitcnt lgkmcnt(0)")
    def block(I, pp, t):
        T = 2 * I + pp
        L = []
        q = Q(0, T); kc = K(0, T); kp = Kprev(pp) if I == 0 else K(0, T - 2)
        Sp, Sc, Pf, m, x, l = t, t + 4, t + 8, t + 12, t + 13, t + 14
        bias = vB0 if I == 0 else vB
        L.append(f"v_mfma_f32_16x16x32_bf16 v[{Sp}:{Sp+3}], v[{kp}:{kp+3}], v[{q}:{q+3}], 0")
        L.append(f"v_mfma_f32_16x16x32_bf16 v[{Sc}:{Sc+3}], v[{kc}:{kc+3}], v[{q}:{q+3}], 0")
        for r in range(4):
            L.append(f"v_cndmask_b32 v{Sc+r}, v{Sc+r}, v{Sp+r}, s[{sSel[r]}:{sSel[r]+1}]")
        for r in range(4):
            L.append(f"v_fma_f32 v{Sc+r}, v{Sc+r}, s{sC}, v{bias[r]}")
        L.append(f"v_max3_f32 v{m}, v{Sc}, v{Sc+1}, v{Sc+2}")
        L.append(f"v_max_f32 v{m}, v{m}, v{Sc+3}")
        for sw in ("v_permlane16_swap_b32", "v_permlane32_swap_b32"):
            L.append(f"v_mov_b32 v{x}, v{m}")
            L.append(f"{sw} v{x}, v{m}")
            L.append(f"v_max_f32 v{m}, v{x}, v{m}")
        for r in range(4):
            L.append(f"v_sub_f32 v{Sc+r}, v{Sc+r}, v{m}")
        for r in range(4):
            L.append(f"v_exp_f32 v{Sc+r}, v{Sc+r}")
        L.append(f"v_add_f32 v{l}, v{Sc}, v{Sc+1}")
        L.append(f"v_add_f32 v{x}, v{Sc+2}, v{Sc+3}")
        L.append(f"v_add_f32 v{l}, v{l}, v{x}")
        for sw in ("v_permlane16_swap_b32", "v_permlane32_swap_b32"):
            L.append(f"v_mov_b32 v{x}, v{l}")
            L.append(f"{sw} v{x}, v{l}")
            L.append(f"v_add_f32 v{l}, v{x}, v{l}")
        L.append(f"v_rcp_f32 v{l}, v{l}")
        for r in range(4):
            L.append(f"v_mul_f32 v{Sc+r}, v{Sc+r}, v{l}")
        L.append(f"v_cvt_pk_bf16_f32 v{m}, v{Sc}, v{Sc+1}")
        L.append(f"v_cvt_pk_bf16_f32 v{x}, v{Sc+2}, v{Sc+3}")
        L.append(f"v_and_b32 v{Pf}, v{m}, v{vMp[0]}")
        L.append(f"v_and_b32 v{Pf+1}, v{x}, v{vMp[1]}")
        L.append(f"v_and_b32 v{Pf+2}, v{m}, v{vMc[0]}")
        L.append(f"v_and_b32 v{Pf+3}, v{x}, v{vMc[1]}")
        for b in range(2):
            va = Vp(b, pp, I); o = Sp if b == 0 else Sc
            L.append(f"v_mfma_f32_16x16x32_bf16 v[{o}:{o+3}], v[{va}:{va+3}], v[{Pf}:{Pf+3}], 0")
        return L
    tA, tB = 80, 96
    for I in range(4):
        la = block(I, 0, tA); lb = block(I, 1, tB)
        for x, y in zip(la, lb):
            p(x); p(y)
        st = 144 + 8 * (I & 1)
        for b in range(2):
            oa = tA + 4 * b; ob = tB + 4 * b; d = st + 4 * b
            p(f"v_cvt_pk_bf16_f32 v{d}, v{oa}, v{oa+1}")
            p(f"v_cvt_pk_bf16_f32 v{d+1}, v{oa+2}, v{oa+3}")
            p(f"v_cvt_pk_bf16_f32 v{d+2}, v{ob}, v{ob+1}")
            p(f"v_cvt_pk_bf16_f32 v{d+3}, v{ob+2}, v{ob+3}")
            p(f"v_permlane16_swap_b32 v{d}, v{d+2}")
            p(f"v_permlane16_swap_b32 v{d+1}, v{d+3}")
            p(f"buffer_store_dwordx4 v[{d}:{d+3}], v1, s[{sWS}:{sWS+3}], s{sPb if b == 0 else sPh} offen offset:{I*1024}")
    p("s_waitcnt vmcnt(8)")
    p("v_mov_b32 v80, 0")
    p("v_mov_b32 v81, 0")
    for m in range(8):
        for r in range(4):
            p(f"v_dot2c_f32_bf16 v{80 + (r & 1)}, v{176+4*m+r}, v{208+4*m+r}")
    p("v_add_f32 v80, v80, v81")
    for k in (8, 4, 2, 1):
        p(f"v_add_f32_dpp v80, v80, v80 row_ror:{k} row_mask:0xf bank_mask:0xf")
    p("v_cvt_pk_bf16_f32 v80, v80, v80")
    p("v_lshlrev_b32 v80, 16, v80")
    p("v_mul_f32 v80, 0xbfb8aa3b, v80")
    p("v_exp_f32 v80, v80")
    p("v_add_f32 v80, 1.0, v80")
    p("v_rcp_f32 v80, v80")
    p("v_cvt_pk_bf16_f32 v80, v80, v80")
    p("v_lshlrev_b32 v80, 16, v80")
    p("v_and_b32 v81, 15, v0")
    p("v_cmp_eq_u32 vcc, 0, v81")
    p(f"s_mov_b32 s{sT0}, {G_OFF}")
    p("s_and_saveexec_b64 s[72:73], vcc")
    p(f"buffer_store_dword v80, v7, s[{sWS}:{sWS+3}], s{sT0} offen")
    p("s_mov_b64 exec, s[72:73]")

def gen_k1(name, cfg):
    p = Prog()
    p(f".globl {name}")
    p(".p2align 8")
    p(f".type {name},@function")
    p(f"{name}:")
    p("s_cmp_ge_u32 s2, 256")
    p("s_cbranch_scc1 L_k1_exit")
    ids(p)
    p.ext(cfg['map1'])
    p("s_cbranch_scc1 L_w1")
    gen_qkv(p, cfg)
    gen_w1(p, cfg)
    p("L_k1_end:")
    p("s_cmp_ge_u32 s2, 128")
    p("s_cbranch_scc1 L_k1_exit")
    p(f"s_cmp_lg_u32 s{s_w}, 0")
    p("s_cbranch_scc1 L_k1_exit")
    p(f"s_lshl_b32 s{sT0}, s2, 7")
    p(f"s_add_u32 s{sT0}, s{sT0}, {FLAG_OFF}")
    p("v_mov_b32 v2, 0")
    p("v_lshlrev_b32 v3, 2, v0")
    p("v_cmp_gt_u32 vcc, 32, v0")
    p("s_and_saveexec_b64 s[72:73], vcc")
    p(f"buffer_store_dword v2, v3, s[{sWS}:{sWS+3}], s{sT0} offen")
    p("s_mov_b64 exec, s[72:73]")
    p("L_k1_exit:")
    p("s_endpgm")
    return p
```

```python
from asmlib import *
from k1 import ACT_MB, G_OFF, FLAG_OFF, P1_OFF, WS_USED, KA, srd

sX, sW, sWS, sM, sO = 8, 12, 16, 20, 24
s_w, s_mh, s_nh, s_mb, s_nb, s_role = 28, 29, 30, 31, 32, 33
sT, sN, sSw = 34, 35, 36
sKX, sKW = 37, 38
sTauX, sTauW = 39, 40
sRd, sDel, sMX, sMW, sXw = 41, 42, 43, 44, 45
sT0, sT1 = 46, 47
sW2lo, sW2hi, sW2k = 48, 49, 50
sTile, sSwW = 51, 52
sP = 53
vOX = 1
vOW = [2, 3, 4, 5]
vXa = 6
vWa = [7, 8, 9, 10]
vG = [12, 13, 14, 15]; vOmg = [16, 17, 18, 19]
ACC, TMP, PL = 32, 96, 160
def acc(q, tt, base=ACC): return base + (q * 4 + tt) * 4
def aX(sig, tt): return sig * 16 + tt * 4
def aW(sig, q): return 32 + sig * 16 + q * 4

def mfmas(sig):
    L = []
    for q in range(4):
        for tt in range(4):
            a = acc(q, tt); w = aW(sig, q); x = aX(sig, tt)
            L.append(f"v_mfma_f32_16x16x32_bf16 v[{a}:{a+3}], a[{w}:{w+3}], a[{x}:{x+3}], v[{a}:{a+3}]")
    return L
def reads(sig, h):
    X = [f"ds_read_b128 a[{aX(sig,tt)}:{aX(sig,tt)+3}], v{vXa} offset:{h*8192 + (tt>>1)*1024 + (tt&1)*256}" for tt in range(4)]
    W = []
    for q in range(4):
        for i in range(2):
            w = aW(sig, q) + 2 * i
            W.append(f"ds_read_b64_tr_b16 a[{w}:{w+1}], v{vWa[q]} offset:{h*8192 + i*512}")
    items = spread(X, 0, 1) + spread(W, 0, 1)
    items.sort(key=lambda t: t[0])
    return [x[1][0] for x in items]
def dmaX():
    return [f"buffer_load_dwordx4 v{vOX}, s[{sX}:{sX+3}], s{sKX} offen offset:{j*1024} lds" for j in range(4)]
def dmaW():
    return [f"buffer_load_dwordx4 v{vOW[j]}, s[{sW}:{sW+3}], s{sKW} offen offset:{j*1024} lds" for j in range(4)]
def advX():
    return [f"s_add_u32 s{sTauX}, s{sTauX}, 1", f"s_add_u32 s{sKX}, s{sKX}, 16384",
            f"s_cmp_ge_u32 s{sTauX}, s{sN}", f"s_cselect_b32 s{sX+2}, 0, s{sX+2}"]
def advW():
    return [f"s_add_u32 s{sTauW}, s{sTauW}, 1", f"s_add_u32 s{sKW}, s{sKW}, {64*2048}",
            f"s_cmp_eq_u32 s{sTauW}, s{sSwW}",
            f"s_cselect_b32 s{sW}, s{sW2lo}, s{sW}", f"s_cselect_b32 s{sW+1}, s{sW2hi}, s{sW+1}",
            f"s_cselect_b32 s{sKW}, s{sW2k}, s{sKW}", f"s_cselect_b32 s{sW+2}, {7340032 + 4096}, s{sW+2}",
            f"s_cmp_ge_u32 s{sTauW}, s{sN}", f"s_cselect_b32 s{sW+2}, 0, s{sW+2}"]

def gen_k2(name, cfg):
    NS = cfg.get('NS', 5); SL = 32768
    n_early, n_final = cfg['n_early'], cfg['n_final']
    assert n_early + n_final == 72
    p = Prog()
    p(f".globl {name}")
    p(".p2align 8")
    p(f".type {name},@function")
    p(f"{name}:")
    p("s_cmp_ge_u32 s2, 256")
    p("s_cbranch_scc1 L_k2_exit")
    p(f"s_load_dwordx2 s[4:5], s[0:1], {KA['wo']}")
    p(f"s_load_dwordx2 s[6:7], s[0:1], {KA['w2']}")
    p(f"s_load_dwordx2 s[54:55], s[0:1], {KA['b2']}")
    p(f"s_load_dwordx2 s[56:57], s[0:1], {KA['ws']}")
    p(f"s_load_dwordx2 s[58:59], s[0:1], {KA['out']}")
    p("v_lshrrev_b32 v1, 6, v0")
    p("v_and_b32 v0, 63, v0")
    p("s_nop 0")
    p(f"v_readfirstlane_b32 s{s_w}, v1")
    p("s_nop 3")
    p(f"s_lshr_b32 s{s_mh}, s{s_w}, 1")
    p(f"s_and_b32 s{s_nh}, s{s_w}, 1")
    p.ext(cfg['map2'])
    p(f"s_lshl_b32 s{sTile}, s{s_mb}, 3")
    p(f"s_add_u32 s{sTile}, s{sTile}, s{s_nb}")
    p("s_waitcnt lgkmcnt(0)")
    srd(p, sX, 56, 57, WS_USED)
    srd(p, sWS, 56, 57, WS_USED)
    srd(p, sM, 54, 55, 2048)
    srd(p, sO, 58, 59, 0x400000)
    p(f"s_sub_u32 s{sW2lo}, s6, 4096")
    p(f"s_subb_u32 s{sW2hi}, s7, 0")
    p(f"s_mov_b32 s{sW2k}, 0")
    p(f"s_cmp_eq_u32 s{s_role}, 1")
    p("s_cbranch_scc1 L_k2_early_setup")
    x0 = n_early - 16
    p(f"s_mov_b32 s{sW}, s{sW2lo}")
    p(f"s_mov_b32 s{sW+1}, s{sW2hi}")
    p(f"s_mov_b32 s{sW+2}, {7340032 + 4096}")
    p(f"s_mov_b32 s{sW+3}, 0x00020000")
    p(f"s_mov_b32 s{sKW}, {x0*64*2048}")
    p(f"s_mov_b32 s{sKX}, {n_early*16384}")
    p(f"s_mov_b32 s{sN}, {n_final}")
    p(f"s_mov_b32 s{sSw}, -1")
    p(f"s_mov_b32 s{sSwW}, -1")
    p("s_branch L_k2_setup_done")
    p("L_k2_early_setup:")
    srd(p, sW, 4, 5, 2097152, bias=4096)
    p(f"s_mov_b32 s{sKW}, 0")
    p(f"s_mov_b32 s{sKX}, 0")
    p(f"s_mov_b32 s{sN}, {n_early}")
    p(f"s_mov_b32 s{sSw}, 16")
    p(f"s_mov_b32 s{sSwW}, 16")
    p("L_k2_setup_done:")
    p(f"s_mul_i32 s{sT0}, s{s_mb}, {ACT_MB}")
    p(f"s_add_u32 s{sKX}, s{sKX}, s{sT0}")
    p(f"s_lshl_b32 s{sXw}, s{s_w}, 12")
    p(f"s_add_u32 s{sKX}, s{sKX}, s{sXw}")
    p(f"v_lshlrev_b32 v{vOX}, 4, v0")
    p("v_lshrrev_b32 v20, 3, v0")
    p("v_and_b32 v21, 7, v0")
    p("v_and_b32 v22, 2, v20")
    p("v_lshlrev_b32 v23, 11, v20")
    p(f"s_lshl_b32 s{sT0}, s{s_w}, 15")
    p(f"s_lshl_b32 s{sT1}, s{s_nb}, 8")
    p(f"s_add_u32 s{sT0}, s{sT0}, s{sT1}")
    p(f"v_add_u32 v23, s{sT0}, v23")
    for jj in range(4):
        kgl, cc = jj >> 1, jj & 1
        p(f"v_or_b32 v24, {kgl << 2}, v22")
        p("v_xor_b32 v24, v21, v24")
        p("v_lshlrev_b32 v24, 4, v24")
        p("v_add_u32 v24, v24, v23")
        p(f"v_add_u32 v{vOW[jj]}, {kgl*8*2048 + cc*128 - jj*1024 + 4096}, v24")
    p("v_and_b32 v20, 15, v0")
    p("v_lshrrev_b32 v21, 4, v0")
    p("v_lshrrev_b32 v22, 1, v21")
    p("v_lshlrev_b32 v22, 12, v22")
    p("v_and_b32 v23, 1, v21")
    p("v_lshlrev_b32 v24, 9, v23")
    p("v_add_u32 v22, v22, v24")
    p("v_lshlrev_b32 v24, 4, v20")
    p("v_add_u32 v22, v22, v24")
    p(f"s_lshl_b32 s{sT0}, s{s_mh}, 11")
    p(f"v_add_u32 v{vXa}, s{sT0}, v22")
    p("v_lshrrev_b32 v24, 2, v0")
    p("v_and_b32 v24, 3, v24")
    p("v_and_b32 v25, 3, v0")
    p("v_lshrrev_b32 v26, 1, v25")
    p("v_and_b32 v27, 2, v24")
    p("v_lshlrev_b32 v28, 2, v23")
    p("v_or_b32 v27, v27, v28")
    p("v_lshlrev_b32 v28, 11, v21")
    p("v_lshlrev_b32 v29, 7, v24")
    p("v_add_u32 v28, v28, v29")
    p("v_and_b32 v29, 1, v25")
    p("v_lshlrev_b32 v29, 3, v29")
    p("v_add_u32 v28, v28, v29")
    p(f"s_lshl_b32 s{sT0}, s{s_nh}, 10")
    p(f"s_add_u32 s{sT0}, s{sT0}, 16384")
    p(f"v_add_u32 v28, s{sT0}, v28")
    for q in range(4):
        p(f"v_or_b32 v29, {2*q}, v26")
        p("v_xor_b32 v29, v29, v27")
        p("v_lshlrev_b32 v29, 4, v29")
        p(f"v_add_u32 v{vWa[q]}, v28, v29")
    p("v_lshlrev_b32 v22, 3, v20")
    p(f"s_lshl_b32 s{sT0}, s{s_mh}, 8")
    p(f"v_add_u32 v22, s{sT0}, v22")
    p(f"s_lshl_b32 s{sT0}, s{s_mb}, 9")
    p(f"s_add_u32 s{sT0}, s{sT0}, {G_OFF}")
    for tt in range(4):
        p(f"buffer_load_dword v{vG[tt]}, v22, s[{sWS}:{sWS+3}], s{sT0} offen offset:{(tt>>1)*128 + (tt&1)*4}")
    p("v_lshlrev_b32 v23, 3, v21")
    p(f"s_lshl_b32 s{sT0}, s{s_nb}, 8")
    p(f"s_lshl_b32 s{sT1}, s{s_nh}, 7")
    p(f"s_add_u32 s{sT0}, s{sT0}, s{sT1}")
    for q in range(4):
        p(f"buffer_load_dwordx2 v[{24+2*q}:{25+2*q}], v23, s[{sM}:{sM+3}], s{sT0} offen offset:{q*32}")
    for st in range(NS):
        p(f"s_add_u32 m0, s{sXw}, {st*SL}")
        p("s_nop 0")
        p.ext(dmaX())
        if st < NS - 1:
            p(f"s_add_u32 s{sKX}, s{sKX}, 16384")
            p(f"s_add_u32 m0, s{sXw}, {st*SL + 16384}")
            p("s_nop 0")
            p.ext(dmaW())
            if st < NS - 2:
                p(f"s_add_u32 s{sKW}, s{sKW}, {64*2048}")
    p(f"s_mov_b32 s{sTauX}, {NS-1}")
    p(f"s_mov_b32 s{sTauW}, {NS-2}")
    npro = 4 * (2 * NS - 1)
    p(f"s_waitcnt vmcnt({npro})")
    for tt in range(4):
        p(f"v_sub_f32 v{vOmg[tt]}, 1.0, v{vG[tt]}")
        p(f"v_cvt_pk_bf16_f32 v{vOmg[tt]}, v{vOmg[tt]}, v{vOmg[tt]}")
        p(f"v_lshlrev_b32 v{vOmg[tt]}, 16, v{vOmg[tt]}")
    p(f"s_cmp_eq_u32 s{s_role}, 1")
    p("s_cbranch_scc1 L_k2_zero")
    for q in range(4):
        src = 24 + 2 * q
        p(f"v_lshlrev_b32 v20, 16, v{src}")
        p(f"v_and_b32 v21, 0xffff0000, v{src}")
        p(f"v_lshlrev_b32 v22, 16, v{src+1}")
        p(f"v_and_b32 v23, 0xffff0000, v{src+1}")
        for tt in range(4):
            a = acc(q, tt)
            p(f"v_mov_b64 v[{a}:{a+1}], v[20:21]")
            p(f"v_mov_b64 v[{a+2}:{a+3}], v[22:23]")
    p("s_branch L_k2_init_done")
    p("L_k2_zero:")
    for a in range(ACC, ACC + 64, 2):
        p(f"v_mov_b64 v[{a}:{a+1}], 0")
    p("L_k2_init_done:")
    p(f"s_waitcnt vmcnt({npro - 8})")
    p("s_barrier")
    p.ext(reads(0, 0))
    p(f"s_mov_b32 s{sRd}, 0")
    p(f"s_mov_b32 s{sT}, 0")
    p(f"s_add_u32 s{sMW}, s{sXw}, {(NS-1)*SL + 16384}")
    p("s_waitcnt lgkmcnt(0)")
    p("L_k2_loop:")
    p(f"s_cmp_eq_u32 s{sT}, s{sSw}")
    p("s_cbranch_scc0 L_k2_nosw")
    p("s_nop 7")
    for q in range(4):
        for tt in range(4):
            a = acc(q, tt); t = acc(q, tt, TMP)
            for r in range(4):
                p(f"v_mul_f32 v{t+r}, v{a+r}, v{vG[tt]}")
    for a in range(ACC, ACC + 64, 2):
        p(f"v_mov_b64 v[{a}:{a+1}], 0")
    p("s_nop 1")
    p("L_k2_nosw:")
    dm = [advW() + [f"s_mov_b32 m0, s{sMW}"]] + [[x] for x in dmaW()]
    items = spread(reads(1, 1), 0.0, 0.72)
    items += [(0.0, dm[0][:5]), (0.07, dm[0][5:])] + spread(dm[1:], 0.15, 0.95)
    p.ext(interleave(mfmas(0), items))
    p(f"s_waitcnt vmcnt({8*(NS-2)}) lgkmcnt(0)")
    p("s_barrier")
    pre = [f"s_add_u32 s{sMX}, s{sRd}, s{sXw}", f"s_add_u32 s{sMW}, s{sMX}, 16384",
           f"s_add_u32 s{sT0}, s{sRd}, {SL}", f"s_cmp_eq_u32 s{sT0}, {NS*SL}", f"s_cselect_b32 s{sT0}, 0, s{sT0}",
           f"s_sub_u32 s{sDel}, s{sT0}, s{sRd}", f"s_mov_b32 s{sRd}, s{sT0}",
           f"v_add_u32 v{vXa}, s{sDel}, v{vXa}"] + [f"v_add_u32 v{vWa[q]}, s{sDel}, v{vWa[q]}" for q in range(4)]
    items = [(0.0, pre[:7])] + [(0.03, pre[7:10]), (0.09, pre[10:])]
    items += spread(reads(0, 0), 0.13, 0.78)
    dm = [advX() + [f"s_mov_b32 m0, s{sMX}"]] + [[x] for x in dmaX()]
    items += [(0.2, dm[0])] + spread(dm[1:], 0.27, 0.97)
    p.ext(interleave(mfmas(1), items))
    p("s_waitcnt lgkmcnt(0)")
    p(f"s_add_u32 s{sT}, s{sT}, 1")
    p(f"s_cmp_lt_u32 s{sT}, s{sN}")
    p("s_cbranch_scc1 L_k2_loop")
    p("s_waitcnt vmcnt(0)")
    p(f"s_lshl_b32 s{sP}, s{sTile}, 16")
    p(f"s_lshl_b32 s{sT0}, s{s_w}, 14")
    p(f"s_add_u32 s{sP}, s{sP}, s{sT0}")
    p(f"s_add_u32 s{sP}, s{sP}, {P1_OFF}")
    p(f"s_lshl_b32 s{sT1}, s{sTile}, 7")
    p(f"s_add_u32 s{sT1}, s{sT1}, {FLAG_OFF}")
    p(f"s_cmp_eq_u32 s{s_role}, 1")
    p("s_cbranch_scc0 L_k2_final")
    p("s_nop 7")
    for q in range(4):
        for tt in range(4):
            a = acc(q, tt); t = acc(q, tt, TMP)
            for r in range(4):
                p(f"v_fma_f32 v{t+r}, v{a+r}, v{vOmg[tt]}, v{t+r}")
            idx = q * 4 + tt
            if idx % 4 == 0:
                p(f"s_add_u32 s{sT0}, s{sP}, {idx*1024}")
            p(f"buffer_store_dwordx4 v[{t}:{t+3}], v{vOX}, s[{sWS}:{sWS+3}], s{sT0} offen offset:{(idx%4)*1024} sc1")
    p("s_waitcnt vmcnt(0)")
    p("s_barrier")
    p(f"s_cmp_eq_u32 s{s_w}, 0")
    p("s_cbranch_scc0 L_k2_exit")
    p("v_mov_b32 v20, 1")
    p("v_mov_b32 v21, 0")
    p("v_cmp_eq_u32 vcc, 0, v0")
    p("s_and_saveexec_b64 s[60:61], vcc")
    p(f"buffer_store_dword v20, v21, s[{sWS}:{sWS+3}], s{sT1} offen sc1")
    p("s_mov_b64 exec, s[60:61]")
    p("s_branch L_k2_exit")
    p("L_k2_final:")
    p("v_mov_b32 v21, 0")
    p(f"s_mov_b32 s62, 0")
    p("L_k2_poll:")
    p(f"buffer_load_dword v20, v21, s[{sWS}:{sWS+3}], s{sT1} offen sc1")
    p("s_waitcnt vmcnt(0)")
    p("v_readfirstlane_b32 s63, v20")
    p("s_nop 3")
    p("s_cmp_eq_u32 s63, 1")
    p("s_cbranch_scc1 L_k2_got")
    p("s_add_u32 s62, s62, 1")
    p("s_cmp_lt_u32 s62, 200000")
    p("s_cbranch_scc0 L_k2_got")
    p("s_sleep 2")
    p("s_branch L_k2_poll")
    p("L_k2_got:")
    for q in range(4):
        for tt in range(4):
            idx = q * 4 + tt; t = acc(q, tt, PL)
            if idx % 4 == 0:
                p(f"s_add_u32 s{sT0}, s{sP}, {idx*1024}")
            p(f"buffer_load_dwordx4 v[{t}:{t+3}], v{vOX}, s[{sWS}:{sWS+3}], s{sT0} offen offset:{(idx%4)*1024} sc1")
    p("v_and_b32 v20, 15, v0")
    p("v_lshrrev_b32 v21, 4, v0")
    p("v_lshlrev_b32 v22, 12, v20")
    p("v_and_b32 v23, 1, v21")
    p("v_lshlrev_b32 v23, 5, v23")
    p("v_add_u32 v22, v22, v23")
    p("v_lshrrev_b32 v23, 1, v21")
    p("v_lshlrev_b32 v23, 4, v23")
    p("v_add_u32 v22, v22, v23")
    p(f"s_lshl_b32 s{sT0}, s{s_mh}, 17")
    p(f"s_lshl_b32 s{sT1}, s{s_nh}, 7")
    p(f"s_add_u32 s{sT0}, s{sT0}, s{sT1}")
    p(f"v_add_u32 v22, s{sT0}, v22")
    p(f"s_lshl_b32 s60, s{s_mb}, 18")
    p(f"s_lshl_b32 s{sT1}, s{s_nb}, 8")
    p(f"s_add_u32 s60, s60, s{sT1}")
    p("s_add_u32 s61, s60, 65536")
    k = 0
    done = 0
    for pair in range(2):
        for tt in range(4):
            t = TMP + 4 * (k % 4); k += 1
            needidx = (2 * pair + 1) * 4 + tt
            p(f"s_waitcnt vmcnt({15 - needidx + done})")
            for half, q in enumerate((2 * pair, 2 * pair + 1)):
                a = acc(q, tt); pl = acc(q, tt, PL)
                for r in range(4):
                    p(f"v_fma_f32 v{a+r}, v{a+r}, v{vOmg[tt]}, v{pl+r}")
                p(f"v_cvt_pk_bf16_f32 v{t+2*half}, v{a}, v{a+1}")
                p(f"v_cvt_pk_bf16_f32 v{t+2*half+1}, v{a+2}, v{a+3}")
            p(f"v_permlane16_swap_b32 v{t}, v{t+2}")
            p(f"v_permlane16_swap_b32 v{t+1}, v{t+3}")
            so = "s60" if tt < 2 else "s61"
            p(f"buffer_store_dwordx4 v[{t}:{t+3}], v22, s[{sO}:{sO+3}], {so} offen offset:{(tt&1)*2048 + pair*64}")
            done += 1
    p("L_k2_exit:")
    p("s_endpgm")
    return p
```

```python
import sys
from asmlib import *
import k1, k2

NAME = "gated_mix__sliding_local_dilated__dense_activation_squared_relu__prompt"
HEADER = open("cdna_kernels/" + NAME + ".s.ref").read().split("; Override launch")[0]

def kd(name, vgpr=512, accum=256, sgpr=102):
    return f""".amdhsa_kernel {name}
  .amdhsa_next_free_vgpr {vgpr}
  .amdhsa_next_free_sgpr {sgpr}
  .amdhsa_accum_offset {accum}
  .amdhsa_group_segment_fixed_size 0
  .amdhsa_kernarg_size 96
  .amdhsa_user_sgpr_count 2
  .amdhsa_user_sgpr_kernarg_segment_ptr 1
  .amdhsa_system_sgpr_workgroup_id_x 1
.end_amdhsa_kernel
"""

def default_cfg():
    cfg = {}
    cfg['map1'] = [f"s_and_b32 s4, s2, 7", "s_lshr_b32 s5, s2, 3", "s_and_b32 s6, s4, 3",
                   f"s_lshr_b32 s{k1.s_rb}, s5, 2", "s_and_b32 s5, s5, 3", "s_lshl_b32 s6, s6, 2",
                   f"s_add_u32 s{k1.s_ct}, s6, s5", "s_cmp_ge_u32 s4, 4"]
    cfg['k0w1'] = [f"s_mov_b32 s{k1.sKa}, 0"]
    cfg['k0qkv'] = [f"s_mov_b32 s{k1.sKa}, 0"]
    cfg['map2'] = ["s_and_b32 s60, s2, 7", "s_lshr_b32 s61, s2, 3", "s_and_b32 s62, s60, 3", "s_lshl_b32 s62, s62, 2",
                   "s_lshr_b32 s63, s61, 3", f"s_add_u32 s{k2.s_mb}, s62, s63", f"s_and_b32 s{k2.s_nb}, s61, 7",
                   "s_cmp_lt_u32 s60, 4", f"s_cselect_b32 s{k2.s_role}, 1, 0"]
    cfg['NS'] = 5
    cfg['n_early'] = 32; cfg['n_final'] = 40
    return cfg

def build(cfg, n1="gm_phase1_kernel", n2="gm_phase2_kernel"):
    p1 = k1.gen_k1(n1, cfg); p2 = k2.gen_k2(n2, cfg)
    l1, c1 = fix_hazards(p1.L); l2, c2 = fix_hazards(p2.L)
    lds2 = cfg.get('NS', 5) * 32768
    out = HEADER
    out += f"; @launch kernel={n1} grid=(256,1,1) block=(256,1,1) lds=159744\n"
    out += f"; @launch kernel={n2} grid=(256,1,1) block=(256,1,1) lds={lds2}\n"
    out += '.amdgcn_target "amdgcn-amd-amdhsa--gfx950"\n.text\n'
    out += "\n".join(l1) + "\n" + "\n".join(l2) + "\n"
    out += '.section .rodata,"a"\n.p2align 6\n' + kd(n1) + ".p2align 6\n" + kd(n2)
    return out, (c1, c2)

if __name__ == "__main__":
    cfg = default_cfg()
    for a in sys.argv[2:]:
        k, v = a.split("=", 1); cfg[k] = eval(v)
    txt, c = build(cfg)
    dst = sys.argv[1] if len(sys.argv) > 1 else "v1.s"
    open(dst, "w").write(txt)
    print("nops inserted", c, "bytes", len(txt))
```

```python
from asmlib import *

ACT_MB = 288 * 4096
G_OFF = 0x1200000
FLAG_OFF = 0x1204000
SYNC_OFF = 0x1208000
P1_OFF = 0x1210000
STAMP_OFF = P1_OFF + 128 * 65536
WS_USED = STAMP_OFF + 65536

KA = dict(Ax=0, wqkv=8, wo=16, Bx=24, w1=32, b1=40, w2=48, b2=56, gw=64, out=72, dbg=80, ws=88)

sX, sW, sWS, sM = 8, 12, 16, 20
s_w, s_mh, s_nh, s_rb, s_ct = 28, 29, 30, 31, 32
s_it = 33
sMB = [34, 35, 36, 37]
sKb, sKB, sKa, sKA0, sKA1, sKH = 38, 39, 40, 41, 42, 43
sMA, sMA1, sMH = 44, 45, 46
sRd, sDel, sDelH, sT0, sT1, sRow = 47, 48, 49, 50, 51, 52
sAw, sHw = 53, 54
sSel = [56, 58, 60, 62]
sP, sPb, sPh = 64, 65, 66
sC = 67
vLane = 0
vOA = [1, 2, 3, 4]
vOB = [5, 6, 7]
vOH = 8
vXa = [9, 10]
vWa = [11, 12]
vWh = 13
def aX(sig, T): return sig * 40 + T * 4
def aW(sig, p): return 80 + sig * 28 + p * 4

def stamp(p, cfg, i):
    if cfg.get('stamps'):
        p(f"s_memrealtime s[{76+2*i}:{77+2*i}]")

def stamp_out(p, cfg, kern, srdreg, wavereg, tag):
    if not cfg.get('stamps'): return
    p("s_waitcnt vmcnt(0)")
    p("s_memrealtime s[90:91]")
    p("s_waitcnt lgkmcnt(0)")
    p(f"s_cmp_lg_u32 s{wavereg}, 0")
    p(f"s_cbranch_scc1 L_nostamp_{tag}")
    p(f"s_lshl_b32 s74, s2, 6")
    p(f"s_add_u32 s74, s74, {STAMP_OFF + kern * 16384}")
    for i in range(8):
        p(f"v_mov_b32 v{200+i}, s{76+2*i}")
    p("v_mov_b32 v208, 0")
    p(f"buffer_store_dwordx4 v[200:203], v208, s[{srdreg}:{srdreg+3}], s74 offen")
    p(f"buffer_store_dwordx4 v[204:207], v208, s[{srdreg}:{srdreg+3}], s74 offen offset:16")
    p("s_waitcnt vmcnt(0)")
    p(f"L_nostamp_{tag}:")

def srd(p, s, lo, hi, size, bias=0):
    if bias:
        p(f"s_sub_u32 s{s}, s{lo}, {bias}")
        p(f"s_subb_u32 s{s+1}, s{hi}, 0")
    else:
        p(f"s_mov_b32 s{s}, s{lo}")
        p(f"s_mov_b32 s{s+1}, s{hi}")
    p(f"s_mov_b32 s{s+2}, {size + bias}")
    p(f"s_mov_b32 s{s+3}, 0x00020000")

class Path:
    def __init__(self, kind, mh=None, cfg=None):
        self.kind = kind
        self.mh = mh
        self.cfg = cfg or {}
        if kind == 'w1':
            self.pitch = 7168; self.S = 32768; self.Abase = 61440; self.Hbase = 49152
            self.acc0 = 32; self.np = 7
        else:
            self.pitch = 6144; self.S = 36864; self.Abase = 49152
            self.acc0 = 48; self.np = 6
    def acc(self, p, T):
        return self.acc0 + (p * 8 + T) * 4
    def accH(self, b, pp):
        return 240 + (b * 2 + pp) * 4

    def mfmas(self, sig):
        L = []
        for p in range(self.np):
            for T in range(8):
                a = self.acc(p, T); w = aW(sig, p); x = aX(sig, T)
                if self.kind == 'qkv' and p >= 4:
                    L.append(f"v_mfma_f32_16x16x32_bf16 v[{a}:{a+3}], a[{x}:{x+3}], a[{w}:{w+3}], v[{a}:{a+3}]")
                else:
                    L.append(f"v_mfma_f32_16x16x32_bf16 v[{a}:{a+3}], a[{w}:{w+3}], a[{x}:{x+3}], v[{a}:{a+3}]")
        if self.kind == 'qkv':
            for b in range(2):
                for pp in range(2):
                    a = self.accH(b, pp); x = aX(sig, 8 + pp)
                    if self.mh == 0:
                        w = aW(sig, 2 + b)
                        L.append(f"v_mfma_f32_16x16x32_bf16 v[{a}:{a+3}], a[{w}:{w+3}], a[{x}:{x+3}], v[{a}:{a+3}]")
                    else:
                        w = aW(sig, 4 + b)
                        L.append(f"v_mfma_f32_16x16x32_bf16 v[{a}:{a+3}], a[{x}:{x+3}], a[{w}:{w+3}], v[{a}:{a+3}]")
        return L

    def reads(self, sig, h, bslot):
        L = []
        for T in range(8):
            x = aX(sig, T)
            L.append(f"ds_read_b128 a[{x}:{x+3}], v{vXa[h]} offset:{T*2048}")
        if self.kind == 'qkv':
            for pp in range(2):
                x = aX(sig, 8 + pp)
                L.append(f"ds_read_b128 a[{x}:{x+3}], v{vXa[h]} offset:{32768 - 16384*self.mh + pp*2048}")
        W = []
        for p in range(6):
            cc, b = p >> 1, p & 1
            w = aW(sig, p)
            for i in range(2):
                W.append(f"ds_read_b64_tr_b16 a[{w+2*i}:{w+2*i+1}], v{vWa[b]} offset:{bslot*12288 + cc*1024 + i*512}")
        if self.kind == 'w1':
            w = aW(sig, 6)
            for i in range(2):
                W.append(f"ds_read_b64_tr_b16 a[{w+2*i}:{w+2*i+1}], v{vWh} offset:{h*2048 + i*256}")
        out = []
        items = spread(L, 0, 1) + spread(W, 0, 1)
        items.sort(key=lambda t: t[0])
        return [x[1][0] for x in items]

    def dmaB(self, u):
        return [f"buffer_load_dwordx4 v{vOB[cc]}, s[{sW}:{sW+3}], s{sKB} offen offset:{cc*1024}{self.cfg.get('ntW', '')} lds" for cc in range(3)]
    def dmaA(self, grp):
        so = sKA0 if grp == 0 else sKA1
        return [f"buffer_load_dwordx4 v{vOA[j]}, s[{sX}:{sX+3}], s{so} offen offset:{j*1024}{self.cfg.get('ntX', '')} lds" for j in range(4)]
    def dmaH(self):
        if self.kind == 'w1':
            return [f"buffer_load_dwordx4 v{vOH}, s[{sW}:{sW+3}], s{sKH} offen{self.cfg.get('ntW', '')} lds"]
        return [f"buffer_load_dwordx4 v{vOH}, s[{sX}:{sX+3}], s{sKa} offen lds"]
    def advB(self):
        return [f"s_add_u32 s{sKb}, s{sKb}, 32", f"s_and_b32 s{sKb}, s{sKb}, 1023", f"s_mul_i32 s{sKB}, s{sKb}, {self.pitch}"]
    def advA(self):
        L = [f"s_add_u32 s{sKa}, s{sKa}, 128", f"s_and_b32 s{sKa}, s{sKa}, 2047",
             f"s_add_u32 s{sKA0}, s{sKa}, s{sRow}", f"s_add_u32 s{sKA1}, s{sKA0}, 65536"]
        if self.kind == 'w1':
            L.append(f"s_mul_i32 s{sKH}, s{sKa}, {self.pitch // 2}")
        return L
    def slot_dma(self):
        L = [f"s_add_u32 s{sMA}, s{sRd}, s{sAw}", f"s_add_u32 s{sMA1}, s{sMA}, 4096"]
        if self.kind == 'w1':
            L += [f"s_lshr_b32 s{sT0}, s{sRd}, 3", f"s_add_u32 s{sMH}, s{sT0}, s{sHw}"]
        else:
            L += [f"s_add_u32 s{sMH}, s{sRd}, s{sHw}"]
        return L
    def slot_adv(self):
        S = self.S
        L = [f"s_add_u32 s{sT0}, s{sRd}, {S}", f"s_cmp_eq_u32 s{sT0}, {3*S}", f"s_cselect_b32 s{sT0}, 0, s{sT0}",
             f"s_sub_u32 s{sDel}, s{sT0}, s{sRd}", f"s_mov_b32 s{sRd}, s{sT0}"]
        V = [f"v_add_u32 v{vXa[0]}, s{sDel}, v{vXa[0]}", f"v_add_u32 v{vXa[1]}, s{sDel}, v{vXa[1]}"]
        if self.kind == 'w1':
            L.append(f"s_ashr_i32 s{sDelH}, s{sDel}, 3")
            V.append(f"v_add_u32 v{vWh}, s{sDelH}, v{vWh}")
        return L, V

    def step(self, u):
        sig = u & 1
        mf = self.mfmas(sig)
        n = len(mf)
        items = []
        rd_start = 0.0
        if u & 1:
            L, V = self.slot_adv()
            pre = self.slot_dma() + L + V
            items.append((0.0, pre[:4]))
            items += spread(pre[4:] , 0.0, 0.06)
            items += spread(self.advA(), 0.06, 0.12)
            rd_start = 0.08
        rd = self.reads(sig ^ 1, (u + 1) & 1, (u + 1) & 3)
        items += spread(rd, rd_start, 0.82)
        dm = []
        B = self.dmaB(u)
        dm.append(self.advB() + [f"s_mov_b32 m0, s{sMB[u]}"])
        dm += [[x] for x in B]
        if u & 1:
            A = self.dmaA(0)
            dm.append([f"s_mov_b32 m0, s{sMA}"]); dm += [[x] for x in A]
        else:
            A = self.dmaA(1)
            dm.append([f"s_mov_b32 m0, s{sMA1}"]); dm += [[x] for x in A]
            dm.append([f"s_mov_b32 m0, s{sMH}"]); dm += [[x] for x in self.dmaH()]
        items += spread(dm, 0.14, 0.97)
        out = interleave(mf, items)
        out.append(f"s_waitcnt vmcnt({16 if self.cfg.get('pf_w') == 1 else 15}) lgkmcnt(0)")
        out.append("s_barrier")
        return out

def ids(p):
    p("v_lshrrev_b32 v1, 6, v0")
    p("v_and_b32 v0, 63, v0")
    p("s_nop 0")
    p(f"v_readfirstlane_b32 s{s_w}, v1")
    p("s_nop 3")
    p(f"s_lshr_b32 s{s_mh}, s{s_w}, 1")
    p(f"s_and_b32 s{s_nh}, s{s_w}, 1")

def setup_common(p, P, cfg):
    p("v_lshrrev_b32 v14, 3, v0")
    p("v_and_b32 v15, 7, v0")
    p("v_and_b32 v16, 6, v14")
    p("v_xor_b32 v16, v15, v16")
    p("v_lshlrev_b32 v16, 4, v16")
    p("v_lshlrev_b32 v17, 12, v14")
    p("v_add_u32 v17, v17, v16")
    p(f"s_lshl_b32 s{sT0}, s{s_w}, 17")
    p(f"v_add_u32 v17, s{sT0}, v17")
    for j in range(4):
        c = (16 * (j & 1) + (j >> 1)) * 2048 - j * 1024
        p(f"v_add_u32 v{vOA[j]}, {c}, v17")
    p(f"s_and_b32 s{sT0}, s{s_w}, 1")
    p(f"s_lshl_b32 s{sT0}, s{sT0}, 2")
    p("v_and_b32 v18, 2, v14")
    p(f"v_or_b32 v18, s{sT0}, v18")
    p("v_xor_b32 v18, v15, v18")
    p("v_lshlrev_b32 v18, 4, v18")
    p(f"s_lshl_b32 s{sT0}, s{s_w}, 3")
    p(f"v_add_u32 v19, s{sT0}, v14")
    p(f"s_mov_b32 s{sT1}, {P.pitch}")
    p(f"v_mul_lo_u32 v19, v19, s{sT1}")
    p("v_add_u32 v19, v19, v18")
    for cc in range(3):
        p(f"s_add_u32 s{sT0}, s{sPb}, {cc * P.ccstride - cc * 1024 + 4096}")
        p(f"v_add_u32 v{vOB[cc]}, s{sT0}, v19")
    p("v_and_b32 v20, 15, v0")
    p("v_lshrrev_b32 v21, 4, v0")
    p("v_and_b32 v22, 6, v20")
    p("v_xor_b32 v22, v21, v22")
    p("v_lshlrev_b32 v22, 4, v22")
    p("v_lshlrev_b32 v23, 7, v20")
    p("v_add_u32 v22, v22, v23")
    p(f"s_lshl_b32 s{sT0}, s{s_mh}, 14")
    p(f"s_add_u32 s{sT0}, s{sT0}, {P.Abase}")
    p(f"v_add_u32 v{vXa[0]}, s{sT0}, v22")
    p(f"v_xor_b32 v{vXa[1]}, 64, v{vXa[0]}")
    p("v_lshrrev_b32 v14, 2, v0")
    p("v_and_b32 v14, 3, v14")
    p("v_and_b32 v15, 3, v0")
    p("v_lshrrev_b32 v16, 1, v15")
    p("v_and_b32 v17, 2, v14")
    p("v_and_b32 v18, 1, v21")
    p("v_lshlrev_b32 v19, 2, v18")
    p("v_or_b32 v17, v17, v19")
    p("v_mul_u32_u24 v19, 3072, v21")
    p("v_lshlrev_b32 v23, 7, v14")
    p("v_add_u32 v19, v19, v23")
    p("v_and_b32 v23, 1, v15")
    p("v_lshlrev_b32 v23, 3, v23")
    p("v_add_u32 v19, v19, v23")
    for b in range(2):
        p(f"s_lshl_b32 s{sT0}, s{s_nh}, 2")
        p(f"s_add_u32 s{sT0}, s{sT0}, {2*b}")
        p(f"v_or_b32 v23, s{sT0}, v16")
        p("v_xor_b32 v23, v23, v17")
        p("v_lshlrev_b32 v23, 4, v23")
        p(f"v_add_u32 v{vWa[b]}, v19, v23")
    for u in range(4):
        p(f"s_mul_i32 s{sMB[u]}, s{s_w}, 3072")
        if u: p(f"s_add_u32 s{sMB[u]}, s{sMB[u]}, {u*12288}")
    p(f"s_lshl_b32 s{sAw}, s{s_w}, 13")
    p(f"s_add_u32 s{sAw}, s{sAw}, {P.Abase}")
    p(f"s_lshl_b32 s{sRow}, s{s_rb}, 19")

def prologue_dma(p, P, cfg):
    p(f"s_lshr_b32 s{sKb}, s{sKa}, 1")
    def setA():
        p(f"s_add_u32 s{sKA0}, s{sKa}, s{sRow}")
        p(f"s_add_u32 s{sKA1}, s{sKA0}, 65536")
        if P.kind == 'w1':
            p(f"s_mul_i32 s{sKH}, s{sKa}, {P.pitch // 2}")
    def nextA():
        p(f"s_add_u32 s{sKa}, s{sKa}, 128"); p(f"s_and_b32 s{sKa}, s{sKa}, 2047"); setA()
    def slot(k):
        p(f"s_mov_b32 s{sRd}, {k * P.S}")
        p.ext(P.slot_dma())
    def A(grp):
        p(f"s_mov_b32 m0, s{sMA if grp == 0 else sMA1}"); p("s_nop 0"); p.ext(P.dmaA(grp))
    def H():
        p(f"s_mov_b32 m0, s{sMH}"); p("s_nop 0"); p.ext(P.dmaH())
    def B(u, first=False):
        if first: p(f"s_mul_i32 s{sKB}, s{sKb}, {P.pitch}")
        else: p.ext(P.advB())
        p(f"s_mov_b32 m0, s{sMB[u]}"); p("s_nop 0"); p.ext(P.dmaB(u))
    setA(); slot(0)
    A(0); A(1); H(); B(0, True)
    B(1); nextA(); slot(1); A(0)
    B(2); A(1); H()
    B(3); nextA(); slot(2); A(0)
    if cfg.get('pf_w') == 1:
        p("buffer_load_dword v28, v29, s[92:95], s55 offen"); p("s_add_u32 s55, s55, 256")
    p(f"s_mov_b32 s{sRd}, 0")

def pf_setup(p, cfg):
    if not cfg.get('pf_w'): return
    p(f"s_load_dwordx2 s[72:73], s[0:1], {KA['wo']}")
    p(f"s_load_dwordx2 s[74:75], s[0:1], {KA['w2']}")
    p(f"s_lshl_b32 s{sT0}, s2, 2")
    p(f"s_add_u32 s{sT0}, s{sT0}, s{s_w}")
    p(f"s_mul_i32 s71, s{sT0}, {56*128}")
    p("v_lshlrev_b32 v30, 7, v0")
    p("v_mov_b32 v28, 0x7ff00000")
    p(f"v_cmp_gt_u32 vcc, {8 if cfg['pf_w'] == 1 else 56}, v0")
    p("v_cndmask_b32 v30, v28, v30, vcc")
    p(f"s_lshl_b32 s55, s{sT0}, 11")
    p("v_lshlrev_b32 v29, 7, v0")
    p(f"v_cmp_gt_u32 vcc, {2 if cfg['pf_w'] == 1 else 16}, v0")
    p("v_cndmask_b32 v29, v28, v29, vcc")
    p("s_waitcnt lgkmcnt(0)")
    srd(p, 92, 72, 73, 2097152)
    srd(p, 96, 74, 75, 7340032)

def main_loop(p, P, tag):
    pf = 1 if P.cfg.get('pf_w') == 1 else 0
    p(f"s_waitcnt vmcnt({22 + pf})")
    if P.cfg.get('fused'):
        srd(p, 4, 100, 101, 256)
        p("s_lshr_b32 s24, s2, 3")
        p("s_and_b32 s24, s24, 7")
        p(f"s_cmp_eq_u32 s{s_w}, 0")
        p("s_cselect_b32 s24, s24, -1")
        p.ext(P.cfg.get('pf_it', ["s_lshr_b32 s25, s2, 3", "s_and_b32 s26, s2, 7", "s_add_u32 s25, s25, s26", "s_mul_i32 s26, s25, 37", "s_lshr_b32 s26, s26, 8", "s_mul_i32 s26, s26, 7", "s_sub_u32 s25, s25, s26"]))
        p("v_mov_b32 v17, 1")
        p("v_mov_b32 v18, 0")
    p("s_barrier")
    stamp(p, P.cfg, 1)
    p.ext(P.reads(0, 0, 0))
    p(f"s_waitcnt vmcnt({15 + pf}) lgkmcnt(0)")
    p("s_barrier")
    p(f"s_mov_b32 s{s_it}, 0")
    p(f"L_loop_{tag}:")
    p(f"s_cmp_eq_u32 s{s_it}, 7")
    p(f"s_cselect_b32 s{sX+2}, 0, s{sX+2}")
    p(f"s_cselect_b32 s{sW+2}, 0, s{sW+2}")
    for u in range(4):
        st = P.step(u)
        if P.cfg.get('pf_w') == 2 and u == 0:
            k = len(st) // 4
            st[k:k] = [f"s_cmp_eq_u32 s{s_it}, s25", f"s_cbranch_scc0 L_nopf_{tag}",
                       "buffer_load_dword v28, v30, s[96:99], s71 offen", "buffer_load_dword v28, v29, s[92:95], s55 offen", f"L_nopf_{tag}:"]
        if P.cfg.get('pf_w') == 1 and u in (1, 3):
            k = len(st) // 2
            if u == 1:
                st[k:k] = ["buffer_load_dword v28, v30, s[96:99], s71 offen", "s_add_u32 s71, s71, 1024"]
            else:
                st[k:k] = ["buffer_load_dword v28, v29, s[92:95], s55 offen", "s_add_u32 s55, s55, 256"]
        if P.cfg.get('fused') and u == 2:
            k = len(st) // 3
            st[k:k] = [f"s_cmp_eq_u32 s{s_it}, s24", f"s_cbranch_scc0 L_noinit_{tag}", "s_mov_b64 exec, 1",
                       "buffer_atomic_add v17, v18, s[4:7], 0 offen sc1", "s_mov_b64 exec, -1", f"L_noinit_{tag}:"]
        p.ext(st)
    p(f"s_add_u32 s{s_it}, s{s_it}, 1")
    p(f"s_cmp_lt_u32 s{s_it}, 8")
    p(f"s_cbranch_scc1 L_loop_{tag}")
    stamp(p, P.cfg, 2)
    p("s_waitcnt vmcnt(0)")
    p("s_barrier")


def zero_line(p, cfg):
    if not cfg.get('fused'): return
    p(f"s_lshl_b32 s{sT0}, s2, 7")
    p(f"s_add_u32 s{sT0}, s{sT0}, {SYNC_OFF}")
    p("v_mov_b32 v14, 0")
    p("v_lshlrev_b32 v15, 2, v0")
    p("v_and_b32 v15, 127, v15")
    p(f"buffer_store_dword v14, v15, s[{sWS}:{sWS+3}], s{sT0} offen sc1")

def gen_w1(p, cfg):
    P = Path('w1', cfg=cfg); P.ccstride = 128
    p("L_w1:")
    p(f"s_load_dwordx2 s[4:5], s[0:1], {KA['Ax']}")
    p(f"s_load_dwordx2 s[6:7], s[0:1], {KA['w1']}")
    p(f"s_load_dwordx2 s[24:25], s[0:1], {KA['b1']}")
    p(f"s_load_dwordx2 s[26:27], s[0:1], {KA['ws']}")
    p(f"s_load_dwordx2 s[100:101], s[0:1], {KA['dbg']}")
    p(f"s_mul_i32 s{sT0}, s{s_ct}, 224")
    p(f"s_and_b32 s{sT1}, s{s_ct}, 1")
    p(f"s_lshl_b32 s68, s{sT1}, 5")
    p(f"s_add_u32 s68, s68, s{sT0}")
    p(f"s_cmp_eq_u32 s{sT1}, 1")
    p(f"s_cselect_b32 s69, 0, 192")
    p(f"s_add_u32 s69, s69, s{sT0}")
    p(f"s_lshl_b32 s{sPb}, s68, 1")
    p("s_waitcnt lgkmcnt(0)")
    srd(p, sX, 4, 5, 0x400000)
    srd(p, sW, 6, 7, 7340032, bias=4096)
    srd(p, sWS, 26, 27, WS_USED)
    srd(p, sM, 24, 25, 7168)
    zero_line(p, cfg)
    setup_common(p, P, cfg)
    p("v_lshrrev_b32 v25, 2, v0")
    p("v_and_b32 v26, 3, v0")
    p("v_lshrrev_b32 v27, 3, v25")
    p("v_lshlrev_b32 v27, 1, v27")
    p("v_xor_b32 v26, v26, v27")
    p("v_lshlrev_b32 v26, 4, v26")
    p(f"s_lshl_b32 s{sT0}, s{s_w}, 4")
    p(f"v_add_u32 v25, s{sT0}, v25")
    p(f"s_mov_b32 s{sT1}, {P.pitch}")
    p(f"v_mul_lo_u32 v25, v25, s{sT1}")
    p("v_add_u32 v25, v25, v26")
    p(f"s_lshl_b32 s{sT0}, s69, 1")
    p(f"s_add_u32 s{sT0}, s{sT0}, 4096")
    p(f"v_add_u32 v{vOH}, s{sT0}, v25")
    p("v_lshrrev_b32 v25, 1, v21")
    p("v_lshlrev_b32 v25, 10, v25")
    p("v_lshlrev_b32 v26, 3, v18")
    p("v_add_u32 v26, v26, v14")
    p("v_lshlrev_b32 v26, 6, v26")
    p("v_add_u32 v25, v25, v26")
    p(f"s_lshl_b32 s{sT0}, s{s_nh}, 1")
    p(f"v_or_b32 v26, s{sT0}, v16")
    p("v_lshlrev_b32 v27, 1, v18")
    p("v_xor_b32 v26, v26, v27")
    p("v_lshlrev_b32 v26, 4, v26")
    p("v_add_u32 v25, v25, v26")
    p("v_and_b32 v26, 1, v15")
    p("v_lshlrev_b32 v26, 3, v26")
    p("v_add_u32 v25, v25, v26")
    p(f"v_add_u32 v{vWh}, {P.Hbase}, v25")
    p(f"s_lshl_b32 s{sHw}, s{s_w}, 10")
    p(f"s_add_u32 s{sHw}, s{sHw}, {P.Hbase}")
    p("v_lshlrev_b32 v31, 3, v21")
    p(f"s_lshl_b32 s{sT0}, s{s_nh}, 6")
    p(f"s_add_u32 s{sT0}, s{sT0}, s{sPb}")
    for pp in range(6):
        cc, b = pp >> 1, pp & 1
        p(f"buffer_load_dwordx2 v[{14+2*pp}:{15+2*pp}], v31, s[{sM}:{sM+3}], s{sT0} offen offset:{cc*128 + b*32}")
    p(f"s_lshl_b32 s{sT1}, s{s_nh}, 5")
    p(f"s_lshl_b32 s{sT0}, s69, 1")
    p(f"s_add_u32 s{sT1}, s{sT1}, s{sT0}")
    p(f"buffer_load_dwordx2 v[26:27], v31, s[{sM}:{sM+3}], s{sT1} offen")
    p.ext(cfg['k0w1'])
    pf_setup(p, cfg)
    prologue_dma(p, P, cfg)
    p(f"s_waitcnt vmcnt({34 + (1 if cfg.get('pf_w') == 1 else 0)})")
    for pp in range(7):
        src = 14 + 2 * pp
        p(f"v_lshlrev_b32 v252, 16, v{src}")
        p(f"v_and_b32 v253, 0xffff0000, v{src}")
        p(f"v_lshlrev_b32 v254, 16, v{src+1}")
        p(f"v_and_b32 v255, 0xffff0000, v{src+1}")
        for T in range(8):
            a = P.acc(pp, T)
            if a == 252: continue
            p(f"v_mov_b64 v[{a}:{a+1}], v[252:253]")
            p(f"v_mov_b64 v[{a+2}:{a+3}], v[254:255]")
    main_loop(p, P, "w1")
    p(f"s_lshl_b32 s{sT0}, s{s_rb}, 1")
    p(f"s_add_u32 s{sT0}, s{sT0}, s{s_mh}")
    p(f"s_mul_i32 s{sT0}, s{sT0}, {ACT_MB}")
    p(f"s_lshr_b32 s{sT1}, s68, 4")
    p(f"s_lshl_b32 s70, s{s_nh}, 1")
    p(f"s_add_u32 s{sT1}, s{sT1}, s70")
    p(f"s_add_u32 s{sT1}, s{sT1}, 64")
    p(f"s_lshl_b32 s{sT1}, s{sT1}, 12")
    p(f"s_add_u32 s{sPb}, s{sT0}, s{sT1}")
    p(f"s_lshr_b32 s{sT1}, s69, 4")
    p(f"s_add_u32 s{sT1}, s{sT1}, s{s_nh}")
    p(f"s_add_u32 s{sT1}, s{sT1}, 64")
    p(f"s_lshl_b32 s{sT1}, s{sT1}, 12")
    p(f"s_add_u32 s{sPh}, s{sT0}, s{sT1}")
    p("v_lshlrev_b32 v1, 4, v0")
    k = 0
    for pp in range(7):
        if pp < 6:
            cc, b = pp >> 1, pp & 1
            p(f"s_add_u32 s{sP}, s{sPb}, {(4*cc + b) * 4096}")
        else:
            p(f"s_mov_b32 s{sP}, s{sPh}")
        for R in range(4):
            t = 14 + 4 * (k % 4); k += 1
            a0 = P.acc(pp, 2 * R); a1 = P.acc(pp, 2 * R + 1)
            for a in (a0, a1):
                for r in range(4): p(f"v_max_f32 v{a+r}, 0, v{a+r}")
            for a in (a0, a1):
                p(f"v_pk_mul_f32 v[{a}:{a+1}], v[{a}:{a+1}], v[{a}:{a+1}]")
                p(f"v_pk_mul_f32 v[{a+2}:{a+3}], v[{a+2}:{a+3}], v[{a+2}:{a+3}]")
            p(f"v_cvt_pk_bf16_f32 v{t}, v{a0}, v{a0+1}")
            p(f"v_cvt_pk_bf16_f32 v{t+1}, v{a0+2}, v{a0+3}")
            p(f"v_cvt_pk_bf16_f32 v{t+2}, v{a1}, v{a1+1}")
            p(f"v_cvt_pk_bf16_f32 v{t+3}, v{a1+2}, v{a1+3}")
            p(f"v_permlane16_swap_b32 v{t}, v{t+2}")
            p(f"v_permlane16_swap_b32 v{t+1}, v{t+3}")
            p(f"buffer_store_dwordx4 v[{t}:{t+3}], v1, s[{sWS}:{sWS+3}], s{sP} offen offset:{R*1024}{cfg.get('st1', '')}")
    if cfg.get('fused'):
        p(f"s_mov_b32 s41, {SYNC_OFF + 8*128}")
    p("s_branch L_p3_entry" if cfg.get('fused') else "s_branch L_k1_end")

def gen_qkv(p, cfg):
    P0 = Path('qkv', mh=0, cfg=cfg); P0.ccstride = 2048
    p("L_qkv:")
    p(f"s_load_dwordx2 s[4:5], s[0:1], {KA['Ax']}")
    p(f"s_load_dwordx2 s[6:7], s[0:1], {KA['wqkv']}")
    p(f"s_load_dwordx2 s[24:25], s[0:1], {KA['gw']}")
    p(f"s_load_dwordx2 s[26:27], s[0:1], {KA['ws']}")
    p(f"s_load_dwordx2 s[100:101], s[0:1], {KA['dbg']}")
    p(f"s_lshl_b32 s{sPb}, s{s_ct}, 7")
    p("s_waitcnt lgkmcnt(0)")
    srd(p, sX, 4, 5, 0x400000)
    srd(p, sW, 6, 7, 6291456, bias=4096)
    srd(p, sWS, 26, 27, WS_USED)
    srd(p, sM, 24, 25, 2048)
    zero_line(p, cfg)
    setup_common(p, P0, cfg)
    p("v_lshrrev_b32 v25, 3, v0")
    p("v_and_b32 v26, 7, v0")
    p("v_and_b32 v27, 6, v25")
    p("v_xor_b32 v26, v26, v27")
    p("v_lshlrev_b32 v26, 4, v26")
    p("v_lshlrev_b32 v25, 1, v25")
    p(f"s_lshl_b32 s{sT0}, s{s_rb}, 8")
    p(f"s_lshl_b32 s{sT1}, s{s_nh}, 4")
    p(f"s_add_u32 s{sT0}, s{sT0}, s{sT1}")
    p(f"s_add_u32 s{sT0}, s{sT0}, s{s_mh}")
    p(f"s_sub_u32 s{sT0}, s{sT0}, 32")
    p(f"v_add_u32 v25, s{sT0}, v25")
    p("v_max_i32 v25, 0, v25")
    p("v_lshlrev_b32 v25, 11, v25")
    p(f"v_add_u32 v{vOH}, v25, v26")
    p(f"s_lshl_b32 s{sHw}, s{s_w}, 10")
    p(f"s_add_u32 s{sHw}, s{sHw}, {P0.Abase + 32768}")
    p.ext(cfg['k0qkv'])
    pf_setup(p, cfg)
    prologue_dma(p, P0, cfg)
    for a in range(48, 256, 2):
        p(f"v_mov_b64 v[{a}:{a+1}], 0")
    p(f"s_cmp_eq_u32 s{s_mh}, 1")
    p("s_cbranch_scc1 L_qkv_m1")
    for mh in range(2):
        P = Path('qkv', mh=mh, cfg=cfg); P.ccstride = 2048
        if mh == 1: p("L_qkv_m1:")
        main_loop(p, P, f"qkv{mh}")
        qkv_epilogue(p, P, cfg)
        if cfg.get('fused'):
            p(f"s_mov_b32 s41, {SYNC_OFF}")
        p("s_branch L_p3_entry" if cfg.get('fused') else "s_branch L_k1_end")

def qkv_epilogue(p, P, cfg):
    mh = P.mh
    Q = lambda b, T: P.acc(b, T)
    K = lambda b, T: P.acc(2 + b, T)
    V = lambda b, T: P.acc(4 + b, T)
    Vp = lambda b, pp, idx: 8 + ((b * 2 + pp) * 5 + idx) * 2
    Kprev = lambda pp: 240 + 4 * pp
    for b in range(2):
        for T in range(8):
            I, pp = T >> 1, T & 1
            d = Vp(b, pp, I + 1); a = V(b, T)
            p(f"v_cvt_pk_bf16_f32 v{d}, v{a}, v{a+1}")
            p(f"v_cvt_pk_bf16_f32 v{d+1}, v{a+2}, v{a+3}")
    p("v_lshrrev_b32 v1, 4, v0")
    p(f"s_lshl_b32 s{sT0}, s{s_rb}, 8")
    p(f"s_lshl_b32 s{sT1}, s{s_ct}, 4")
    p(f"s_add_u32 s{sT0}, s{sT0}, s{sT1}")
    p(f"s_lshl_b32 s{sT1}, s{s_w}, 2")
    p(f"s_add_u32 s70, s{sT0}, s{sT1}")
    p(f"v_add_u32 v1, s70, v1")
    p("v_lshlrev_b32 v2, 11, v1")
    p("v_and_b32 v3, 15, v0")
    p("v_lshlrev_b32 v3, 4, v3")
    p("v_add_u32 v2, v2, v3")
    p(f"s_mov_b32 s{sX+2}, 0x400000")
    for m in range(8):
        p(f"buffer_load_dwordx4 v[{176+4*m}:{179+4*m}], v2, s[{sX}:{sX+3}], 0 offen offset:{m*256}")
    for m in range(8):
        p(f"buffer_load_dwordx4 v[{208+4*m}:{211+4*m}], v3, s[{sM}:{sM+3}], 0 offen offset:{m*256}")
    p("v_lshrrev_b32 v7, 4, v1")
    p("v_lshlrev_b32 v7, 7, v7")
    p("v_and_b32 v1, 15, v1")
    p("v_lshlrev_b32 v1, 2, v1")
    p("v_add_u32 v7, v7, v1")
    for T in range(8):
        for X in (Q, K):
            a = X(0, T); c = X(1, T)
            p(f"v_cvt_pk_bf16_f32 v{a}, v{a}, v{a+1}")
            p(f"v_cvt_pk_bf16_f32 v{a+1}, v{a+2}, v{a+3}")
            p(f"v_cvt_pk_bf16_f32 v{a+2}, v{c}, v{c+1}")
            p(f"v_cvt_pk_bf16_f32 v{a+3}, v{c+2}, v{c+3}")
    p("v_lshlrev_b32 v2, 4, v0")
    p(f"s_lshl_b32 s{sT0}, s{s_nh}, 13")
    p(f"v_add_u32 v2, s{sT0}, v2")
    p("v_lshlrev_b32 v3, 3, v0")
    p(f"v_add_u32 v3, s{sT0}, v3")
    if mh == 0:
        for pp in range(2):
            a = P.accH(0, pp); c = P.accH(1, pp)
            p(f"v_cvt_pk_bf16_f32 v{a}, v{a}, v{a+1}")
            p(f"v_cvt_pk_bf16_f32 v{a+1}, v{a+2}, v{a+3}")
            p(f"v_cvt_pk_bf16_f32 v{a+2}, v{c}, v{c+1}")
            p(f"v_cvt_pk_bf16_f32 v{a+3}, v{c+2}, v{c+3}")
        for pp in range(2):
            a = K(0, 6 + pp)
            p(f"ds_write_b128 v2, v[{a}:{a+3}] offset:{pp*1024}")
        for b in range(2):
            for pp in range(2):
                a = Vp(b, pp, 4)
                p(f"ds_write_b64 v3, v[{a}:{a+1}] offset:{2048 + (b*2+pp)*512}")
        p("s_waitcnt lgkmcnt(0)")
        p("s_barrier")
        for b in range(2):
            for pp in range(2):
                a = Vp(b, pp, 0)
                p(f"ds_read_b64 v[{a}:{a+1}], v3 offset:{4096 + (b*2+pp)*512}")
    else:
        for b in range(2):
            for pp in range(2):
                a = P.accH(b, pp)
                p(f"v_cvt_pk_bf16_f32 v{a}, v{a}, v{a+1}")
                p(f"v_cvt_pk_bf16_f32 v{a+1}, v{a+2}, v{a+3}")
                p(f"ds_write_b64 v3, v[{a}:{a+1}] offset:{4096 + (b*2+pp)*512}")
        p("s_waitcnt lgkmcnt(0)")
        p("s_barrier")
        for pp in range(2):
            a = Kprev(pp)
            p(f"ds_read_b128 v[{a}:{a+3}], v2 offset:{pp*1024}")
        for b in range(2):
            for pp in range(2):
                a = Vp(b, pp, 0)
                p(f"ds_read_b64 v[{a}:{a+1}], v3 offset:{2048 + (b*2+pp)*512}")
    vB = [248, 249, 250, 251]; vB0 = [252, 253, 254, 255]; vMp = [4, 5]; vMc = [6, 2]
    p("v_and_b32 v80, 15, v0")
    p("v_lshrrev_b32 v81, 4, v0")
    p("v_lshlrev_b32 v81, 2, v81")
    p("v_add_u32 v82, 9, v80")
    p("v_subrev_u32 v83, 7, v80")
    p(f"s_mov_b32 s{sT0}, 0xf149f2ca")
    p(f"s_cmp_eq_u32 s{s_rb}, 0")
    p(f"s_cselect_b32 s{sT1}, 1, 0")
    for r in range(4):
        p(f"v_add_u32 v84, {r}, v81")
        p(f"v_cmp_ge_i32 s[{sSel[r]}:{sSel[r]+1}], v84, v82")
        p("v_cmp_ge_i32 vcc, v84, v83")
        p("v_cmp_le_i32 s[72:73], v84, v80")
        p("s_nop 4")
        p("s_and_b64 s[72:73], s[72:73], vcc")
        p(f"s_or_b64 s[74:75], s[72:73], s[{sSel[r]}:{sSel[r]+1}]")
        p(f"v_mov_b32 v85, s{sT0}")
        p(f"v_cndmask_b32 v{vB[r]}, v85, 0, s[74:75]")
        if mh == 0:
            p(f"s_cmp_eq_u32 s{sT1}, 1")
            p("s_cselect_b64 s[74:75], s[72:73], s[74:75]")
        p(f"v_cndmask_b32 v{vB0[r]}, v85, 0, s[74:75]")
    p("v_mov_b32 v85, 0xffff")
    p("v_mov_b32 v86, 0xffff0000")
    for q in range(2):
        p(f"v_cndmask_b32 v87, 0, v85, s[{sSel[2*q]}:{sSel[2*q]+1}]")
        p(f"v_cndmask_b32 v88, 0, v86, s[{sSel[2*q+1]}:{sSel[2*q+1]+1}]")
        p(f"v_or_b32 v{vMp[q]}, v87, v88")
        p(f"v_not_b32 v{vMc[q]}, v{vMp[q]}")
    p(f"s_mov_b32 s{sC}, 0x3e8293ee")
    p(f"s_lshl_b32 s{sT0}, s{s_rb}, 1")
    p(f"s_add_u32 s{sT0}, s{sT0}, {mh}")
    p(f"s_mul_i32 s{sT0}, s{sT0}, {ACT_MB}")
    p(f"s_lshl_b32 s{sT1}, s{s_ct}, 1")
    p(f"s_add_u32 s{sT1}, s{sT1}, s{s_nh}")
    p(f"s_lshl_b32 s{sT1}, s{sT1}, 13")
    p(f"s_add_u32 s{sPb}, s{sT0}, s{sT1}")
    p(f"s_add_u32 s{sPh}, s{sPb}, 4096")
    p("v_lshlrev_b32 v1, 4, v0")
    p("s_waitcnt lgkmcnt(0)")
    def block(I, pp, t):
        T = 2 * I + pp
        L = []
        q = Q(0, T); kc = K(0, T); kp = Kprev(pp) if I == 0 else K(0, T - 2)
        Sp, Sc, Pf, m, x, l = t, t + 4, t + 8, t + 12, t + 13, t + 14
        bias = vB0 if I == 0 else vB
        L.append(f"v_mfma_f32_16x16x32_bf16 v[{Sp}:{Sp+3}], v[{kp}:{kp+3}], v[{q}:{q+3}], 0")
        L.append(f"v_mfma_f32_16x16x32_bf16 v[{Sc}:{Sc+3}], v[{kc}:{kc+3}], v[{q}:{q+3}], 0")
        for r in range(4):
            L.append(f"v_cndmask_b32 v{Sc+r}, v{Sc+r}, v{Sp+r}, s[{sSel[r]}:{sSel[r]+1}]")
        for r in range(4):
            L.append(f"v_fma_f32 v{Sc+r}, v{Sc+r}, s{sC}, v{bias[r]}")
        L.append(f"v_max3_f32 v{m}, v{Sc}, v{Sc+1}, v{Sc+2}")
        L.append(f"v_max_f32 v{m}, v{m}, v{Sc+3}")
        for sw in ("v_permlane16_swap_b32", "v_permlane32_swap_b32"):
            L.append(f"v_mov_b32 v{x}, v{m}")
            L.append(f"{sw} v{x}, v{m}")
            L.append(f"v_max_f32 v{m}, v{x}, v{m}")
        for r in range(4):
            L.append(f"v_sub_f32 v{Sc+r}, v{Sc+r}, v{m}")
        for r in range(4):
            L.append(f"v_exp_f32 v{Sc+r}, v{Sc+r}")
        L.append(f"v_add_f32 v{l}, v{Sc}, v{Sc+1}")
        L.append(f"v_add_f32 v{x}, v{Sc+2}, v{Sc+3}")
        L.append(f"v_add_f32 v{l}, v{l}, v{x}")
        for sw in ("v_permlane16_swap_b32", "v_permlane32_swap_b32"):
            L.append(f"v_mov_b32 v{x}, v{l}")
            L.append(f"{sw} v{x}, v{l}")
            L.append(f"v_add_f32 v{l}, v{x}, v{l}")
        L.append(f"v_rcp_f32 v{l}, v{l}")
        for r in range(4):
            L.append(f"v_mul_f32 v{Sc+r}, v{Sc+r}, v{l}")
        L.append(f"v_cvt_pk_bf16_f32 v{m}, v{Sc}, v{Sc+1}")
        L.append(f"v_cvt_pk_bf16_f32 v{x}, v{Sc+2}, v{Sc+3}")
        L.append(f"v_and_b32 v{Pf}, v{m}, v{vMp[0]}")
        L.append(f"v_and_b32 v{Pf+1}, v{x}, v{vMp[1]}")
        L.append(f"v_and_b32 v{Pf+2}, v{m}, v{vMc[0]}")
        L.append(f"v_and_b32 v{Pf+3}, v{x}, v{vMc[1]}")
        for b in range(2):
            va = Vp(b, pp, I); o = Sp if b == 0 else Sc
            L.append(f"v_mfma_f32_16x16x32_bf16 v[{o}:{o+3}], v[{va}:{va+3}], v[{Pf}:{Pf+3}], 0")
        return L
    tA, tB = 80, 96
    for I in range(4):
        la = block(I, 0, tA); lb = block(I, 1, tB)
        for x, y in zip(la, lb):
            p(x); p(y)
        st = 144 + 8 * (I & 1)
        for b in range(2):
            oa = tA + 4 * b; ob = tB + 4 * b; d = st + 4 * b
            p(f"v_cvt_pk_bf16_f32 v{d}, v{oa}, v{oa+1}")
            p(f"v_cvt_pk_bf16_f32 v{d+1}, v{oa+2}, v{oa+3}")
            p(f"v_cvt_pk_bf16_f32 v{d+2}, v{ob}, v{ob+1}")
            p(f"v_cvt_pk_bf16_f32 v{d+3}, v{ob+2}, v{ob+3}")
            p(f"v_permlane16_swap_b32 v{d}, v{d+2}")
            p(f"v_permlane16_swap_b32 v{d+1}, v{d+3}")
            p(f"buffer_store_dwordx4 v[{d}:{d+3}], v1, s[{sWS}:{sWS+3}], s{sPb if b == 0 else sPh} offen offset:{I*1024}{cfg.get('st1', '')}")
    p("s_waitcnt vmcnt(8)")
    p("v_mov_b32 v80, 0")
    p("v_mov_b32 v81, 0")
    for m in range(8):
        for r in range(4):
            p(f"v_dot2c_f32_bf16 v{80 + (r & 1)}, v{176+4*m+r}, v{208+4*m+r}")
    p("v_add_f32 v80, v80, v81")
    for k in (8, 4, 2, 1):
        p(f"v_add_f32_dpp v80, v80, v80 row_ror:{k} row_mask:0xf bank_mask:0xf")
    p("v_cvt_pk_bf16_f32 v80, v80, v80")
    p("v_lshlrev_b32 v80, 16, v80")
    p("v_mul_f32 v80, 0xbfb8aa3b, v80")
    p("v_exp_f32 v80, v80")
    p("v_add_f32 v80, 1.0, v80")
    p("v_rcp_f32 v80, v80")
    p("v_cvt_pk_bf16_f32 v80, v80, v80")
    p("v_lshlrev_b32 v80, 16, v80")
    p("v_and_b32 v81, 15, v0")
    p("v_cmp_eq_u32 vcc, 0, v81")
    p(f"s_mov_b32 s{sT0}, {G_OFF}")
    p("s_and_saveexec_b64 s[72:73], vcc")
    p(f"buffer_store_dword v80, v7, s[{sWS}:{sWS+3}], s{sT0} offen{cfg.get('st1', '')}")
    p("s_mov_b64 exec, s[72:73]")

def gen_k1(name, cfg):
    p = Prog()
    p(f".globl {name}")
    p(".p2align 8")
    p(f".type {name},@function")
    p(f"{name}:")
    p("s_cmp_ge_u32 s2, 256")
    p("s_cbranch_scc1 L_k1_exit")
    stamp(p, cfg, 0)
    ids(p)
    p.ext(cfg['map1'])
    p("s_cbranch_scc1 L_w1")
    gen_qkv(p, cfg)
    gen_w1(p, cfg)
    p("L_k1_end:")
    stamp(p, cfg, 4)
    stamp_out(p, cfg, 0, sWS, s_w, "k1")
    p("s_cmp_ge_u32 s2, 128")
    p("s_cbranch_scc1 L_k1_exit")
    p(f"s_cmp_lg_u32 s{s_w}, 0")
    p("s_cbranch_scc1 L_k1_exit")
    p(f"s_lshl_b32 s{sT0}, s2, 7")
    p(f"s_add_u32 s{sT0}, s{sT0}, {FLAG_OFF}")
    p("v_mov_b32 v2, 0")
    p("v_lshlrev_b32 v3, 2, v0")
    p("v_cmp_gt_u32 vcc, 32, v0")
    p("s_and_saveexec_b64 s[72:73], vcc")
    p(f"buffer_store_dword v2, v3, s[{sWS}:{sWS+3}], s{sT0} offen")
    p("s_mov_b64 exec, s[72:73]")
    p("L_k1_exit:")
    p("s_endpgm")
    return p
```

```python
from asmlib import *
from k1 import ACT_MB, G_OFF, FLAG_OFF, P1_OFF, WS_USED, KA, srd, stamp, stamp_out

sX, sW, sWS, sM, sO = 8, 12, 16, 20, 24
s_w, s_mh, s_nh, s_mb, s_nb, s_role = 28, 29, 30, 31, 32, 33
sT, sN, sSw = 34, 35, 36
sKX, sKW = 37, 38
sTauX, sTauW = 39, 40
sRd, sDel, sMX, sMW, sXw = 41, 42, 43, 44, 45
sT0, sT1 = 46, 47
sW2lo, sW2hi, sW2k = 48, 49, 50
sTile, sSwW = 51, 52
sP = 53
vOX = 1
vOW = [2, 3, 4, 5]
vXa = 6
vWa = [7, 8, 9, 10]
vG = [12, 13, 14, 15]; vOmg = [16, 17, 18, 19]
ACC, TMP, PL = 32, 96, 160
def acc(q, tt, base=ACC): return base + (q * 4 + tt) * 4
def aX(sig, tt): return sig * 16 + tt * 4
def aW(sig, q): return 32 + sig * 16 + q * 4

def mfmas(sig):
    L = []
    for q in range(4):
        for tt in range(4):
            a = acc(q, tt); w = aW(sig, q); x = aX(sig, tt)
            L.append(f"v_mfma_f32_16x16x32_bf16 v[{a}:{a+3}], a[{w}:{w+3}], a[{x}:{x+3}], v[{a}:{a+3}]")
    return L
def reads(sig, h):
    X = [f"ds_read_b128 a[{aX(sig,tt)}:{aX(sig,tt)+3}], v{vXa} offset:{h*8192 + (tt>>1)*1024 + (tt&1)*256}" for tt in range(4)]
    W = []
    for q in range(4):
        for i in range(2):
            w = aW(sig, q) + 2 * i
            W.append(f"ds_read_b64_tr_b16 a[{w}:{w+1}], v{vWa[q]} offset:{h*8192 + i*512}")
    items = spread(X, 0, 1) + spread(W, 0, 1)
    items.sort(key=lambda t: t[0])
    return [x[1][0] for x in items]
def dmaX():
    return [f"buffer_load_dwordx4 v{vOX}, s[{sX}:{sX+3}], s{sKX} offen offset:{j*1024} lds" for j in range(4)]
def dmaW():
    return [f"buffer_load_dwordx4 v{vOW[j]}, s[{sW}:{sW+3}], s{sKW} offen offset:{j*1024} lds" for j in range(4)]
def advX():
    return [f"s_add_u32 s{sTauX}, s{sTauX}, 1", f"s_add_u32 s{sKX}, s{sKX}, 16384",
            f"s_cmp_ge_u32 s{sTauX}, s{sN}", f"s_cselect_b32 s{sX+2}, 0, s{sX+2}"]
def advW():
    return [f"s_add_u32 s{sTauW}, s{sTauW}, 1", f"s_add_u32 s{sKW}, s{sKW}, {64*2048}",
            f"s_cmp_eq_u32 s{sTauW}, s{sSwW}",
            f"s_cselect_b32 s{sW}, s{sW2lo}, s{sW}", f"s_cselect_b32 s{sW+1}, s{sW2hi}, s{sW+1}",
            f"s_cselect_b32 s{sKW}, s{sW2k}, s{sKW}", f"s_cselect_b32 s{sW+2}, {7340032 + 4096}, s{sW+2}",
            f"s_cmp_ge_u32 s{sTauW}, s{sN}", f"s_cselect_b32 s{sW+2}, 0, s{sW+2}"]

def gen_k2(name, cfg):
    NS = cfg.get('NS', 5); SL = 32768
    n_early, n_final = cfg['n_early'], cfg['n_final']
    assert n_early + n_final == 72
    p = Prog()
    p(f".globl {name}")
    p(".p2align 8")
    p(f".type {name},@function")
    p(f"{name}:")
    p("s_cmp_ge_u32 s2, 256")
    p("s_cbranch_scc1 L_k2_exit")
    stamp(p, cfg, 0)
    p(f"s_load_dwordx2 s[4:5], s[0:1], {KA['wo']}")
    p(f"s_load_dwordx2 s[6:7], s[0:1], {KA['w2']}")
    p(f"s_load_dwordx2 s[54:55], s[0:1], {KA['b2']}")
    p(f"s_load_dwordx2 s[56:57], s[0:1], {KA['ws']}")
    p(f"s_load_dwordx2 s[58:59], s[0:1], {KA['out']}")
    p("v_lshrrev_b32 v1, 6, v0")
    p("v_and_b32 v0, 63, v0")
    p("s_nop 0")
    p(f"v_readfirstlane_b32 s{s_w}, v1")
    p("s_nop 3")
    p(f"s_lshr_b32 s{s_mh}, s{s_w}, 1")
    p(f"s_and_b32 s{s_nh}, s{s_w}, 1")
    p.ext(cfg['map2'])
    p(f"s_lshl_b32 s{sTile}, s{s_mb}, 3")
    p(f"s_add_u32 s{sTile}, s{sTile}, s{s_nb}")
    p("s_waitcnt lgkmcnt(0)")
    srd(p, sX, 56, 57, WS_USED)
    srd(p, sWS, 56, 57, WS_USED)
    srd(p, sM, 54, 55, 2048)
    srd(p, sO, 58, 59, 0x400000)
    p(f"s_sub_u32 s{sW2lo}, s6, 4096")
    p(f"s_subb_u32 s{sW2hi}, s7, 0")
    p(f"s_mov_b32 s{sW2k}, 0")
    p(f"s_cmp_eq_u32 s{s_role}, 1")
    p("s_cbranch_scc1 L_k2_early_setup")
    x0 = n_early - 16
    p(f"s_mov_b32 s{sW}, s{sW2lo}")
    p(f"s_mov_b32 s{sW+1}, s{sW2hi}")
    p(f"s_mov_b32 s{sW+2}, {7340032 + 4096}")
    p(f"s_mov_b32 s{sW+3}, 0x00020000")
    p(f"s_mov_b32 s{sKW}, {x0*64*2048}")
    p(f"s_mov_b32 s{sKX}, {n_early*16384}")
    p(f"s_mov_b32 s{sN}, {n_final}")
    p(f"s_mov_b32 s{sSw}, -1")
    p(f"s_mov_b32 s{sSwW}, -1")
    p("s_branch L_k2_setup_done")
    p("L_k2_early_setup:")
    srd(p, sW, 4, 5, 2097152, bias=4096)
    p(f"s_mov_b32 s{sKW}, 0")
    p(f"s_mov_b32 s{sKX}, 0")
    p(f"s_mov_b32 s{sN}, {n_early}")
    p(f"s_mov_b32 s{sSw}, 16")
    p(f"s_mov_b32 s{sSwW}, 16")
    p("L_k2_setup_done:")
    p(f"s_mul_i32 s{sT0}, s{s_mb}, {ACT_MB}")
    p(f"s_add_u32 s{sKX}, s{sKX}, s{sT0}")
    p(f"s_lshl_b32 s{sXw}, s{s_w}, 12")
    p(f"s_add_u32 s{sKX}, s{sKX}, s{sXw}")
    p(f"v_lshlrev_b32 v{vOX}, 4, v0")
    p("v_lshrrev_b32 v20, 3, v0")
    p("v_and_b32 v21, 7, v0")
    p("v_and_b32 v22, 2, v20")
    p("v_lshlrev_b32 v23, 11, v20")
    p(f"s_lshl_b32 s{sT0}, s{s_w}, 15")
    p(f"s_lshl_b32 s{sT1}, s{s_nb}, 8")
    p(f"s_add_u32 s{sT0}, s{sT0}, s{sT1}")
    p(f"v_add_u32 v23, s{sT0}, v23")
    for jj in range(4):
        kgl, cc = jj >> 1, jj & 1
        p(f"v_or_b32 v24, {kgl << 2}, v22")
        p("v_xor_b32 v24, v21, v24")
        p("v_lshlrev_b32 v24, 4, v24")
        p("v_add_u32 v24, v24, v23")
        p(f"v_add_u32 v{vOW[jj]}, {kgl*8*2048 + cc*128 - jj*1024 + 4096}, v24")
    p("v_and_b32 v20, 15, v0")
    p("v_lshrrev_b32 v21, 4, v0")
    p("v_lshrrev_b32 v22, 1, v21")
    p("v_lshlrev_b32 v22, 12, v22")
    p("v_and_b32 v23, 1, v21")
    p("v_lshlrev_b32 v24, 9, v23")
    p("v_add_u32 v22, v22, v24")
    p("v_lshlrev_b32 v24, 4, v20")
    p("v_add_u32 v22, v22, v24")
    p(f"s_lshl_b32 s{sT0}, s{s_mh}, 11")
    p(f"v_add_u32 v{vXa}, s{sT0}, v22")
    p("v_lshrrev_b32 v24, 2, v0")
    p("v_and_b32 v24, 3, v24")
    p("v_and_b32 v25, 3, v0")
    p("v_lshrrev_b32 v26, 1, v25")
    p("v_and_b32 v27, 2, v24")
    p("v_lshlrev_b32 v28, 2, v23")
    p("v_or_b32 v27, v27, v28")
    p("v_lshlrev_b32 v28, 11, v21")
    p("v_lshlrev_b32 v29, 7, v24")
    p("v_add_u32 v28, v28, v29")
    p("v_and_b32 v29, 1, v25")
    p("v_lshlrev_b32 v29, 3, v29")
    p("v_add_u32 v28, v28, v29")
    p(f"s_lshl_b32 s{sT0}, s{s_nh}, 10")
    p(f"s_add_u32 s{sT0}, s{sT0}, 16384")
    p(f"v_add_u32 v28, s{sT0}, v28")
    for q in range(4):
        p(f"v_or_b32 v29, {2*q}, v26")
        p("v_xor_b32 v29, v29, v27")
        p("v_lshlrev_b32 v29, 4, v29")
        p(f"v_add_u32 v{vWa[q]}, v28, v29")
    p("v_lshlrev_b32 v22, 3, v20")
    p(f"s_lshl_b32 s{sT0}, s{s_mh}, 8")
    p(f"v_add_u32 v22, s{sT0}, v22")
    p(f"s_lshl_b32 s{sT0}, s{s_mb}, 9")
    p(f"s_add_u32 s{sT0}, s{sT0}, {G_OFF}")
    for tt in range(4):
        p(f"buffer_load_dword v{vG[tt]}, v22, s[{sWS}:{sWS+3}], s{sT0} offen offset:{(tt>>1)*128 + (tt&1)*4}")
    p("v_lshlrev_b32 v23, 3, v21")
    p(f"s_lshl_b32 s{sT0}, s{s_nb}, 8")
    p(f"s_lshl_b32 s{sT1}, s{s_nh}, 7")
    p(f"s_add_u32 s{sT0}, s{sT0}, s{sT1}")
    for q in range(4):
        p(f"buffer_load_dwordx2 v[{24+2*q}:{25+2*q}], v23, s[{sM}:{sM+3}], s{sT0} offen offset:{q*32}")
    for st in range(NS):
        p(f"s_add_u32 m0, s{sXw}, {st*SL}")
        p("s_nop 0")
        p.ext(dmaX())
        if st < NS - 1:
            p(f"s_add_u32 s{sKX}, s{sKX}, 16384")
            p(f"s_add_u32 m0, s{sXw}, {st*SL + 16384}")
            p("s_nop 0")
            p.ext(dmaW())
            if st < NS - 2:
                p(f"s_add_u32 s{sKW}, s{sKW}, {64*2048}")
    stamp(p, cfg, 1)
    p(f"s_mov_b32 s{sTauX}, {NS-1}")
    p(f"s_mov_b32 s{sTauW}, {NS-2}")
    npro = 4 * (2 * NS - 1)
    p(f"s_waitcnt vmcnt({npro})")
    for tt in range(4):
        p(f"v_sub_f32 v{vOmg[tt]}, 1.0, v{vG[tt]}")
        p(f"v_cvt_pk_bf16_f32 v{vOmg[tt]}, v{vOmg[tt]}, v{vOmg[tt]}")
        p(f"v_lshlrev_b32 v{vOmg[tt]}, 16, v{vOmg[tt]}")
    p(f"s_cmp_eq_u32 s{s_role}, 1")
    p("s_cbranch_scc1 L_k2_zero")
    for q in range(4):
        src = 24 + 2 * q
        p(f"v_lshlrev_b32 v20, 16, v{src}")
        p(f"v_and_b32 v21, 0xffff0000, v{src}")
        p(f"v_lshlrev_b32 v22, 16, v{src+1}")
        p(f"v_and_b32 v23, 0xffff0000, v{src+1}")
        for tt in range(4):
            a = acc(q, tt)
            p(f"v_mov_b64 v[{a}:{a+1}], v[20:21]")
            p(f"v_mov_b64 v[{a+2}:{a+3}], v[22:23]")
    p("s_branch L_k2_init_done")
    p("L_k2_zero:")
    for a in range(ACC, ACC + 64, 2):
        p(f"v_mov_b64 v[{a}:{a+1}], 0")
    p("L_k2_init_done:")
    p(f"s_waitcnt vmcnt({npro - 8})")
    p("s_barrier")
    stamp(p, cfg, 2)
    p.ext(reads(0, 0))
    p(f"s_mov_b32 s{sRd}, 0")
    p(f"s_mov_b32 s{sT}, 0")
    p(f"s_add_u32 s{sMW}, s{sXw}, {(NS-1)*SL + 16384}")
    p("s_waitcnt lgkmcnt(0)")
    p("L_k2_loop:")
    p(f"s_cmp_eq_u32 s{sT}, s{sSw}")
    p("s_cbranch_scc0 L_k2_nosw")
    p("s_nop 7")
    for q in range(4):
        for tt in range(4):
            a = acc(q, tt); t = acc(q, tt, TMP)
            for r in range(4):
                p(f"v_mul_f32 v{t+r}, v{a+r}, v{vG[tt]}")
    for a in range(ACC, ACC + 64, 2):
        p(f"v_mov_b64 v[{a}:{a+1}], 0")
    p("s_nop 1")
    p("L_k2_nosw:")
    dm = [advW() + [f"s_mov_b32 m0, s{sMW}"]] + [[x] for x in dmaW()]
    items = spread(reads(1, 1), 0.0, 0.72)
    items += [(0.0, dm[0][:5]), (0.07, dm[0][5:])] + spread(dm[1:], 0.15, 0.95)
    p.ext(interleave(mfmas(0), items))
    p(f"s_waitcnt vmcnt({8*(NS-2)}) lgkmcnt(0)")
    p("s_barrier")
    pre = [f"s_add_u32 s{sMX}, s{sRd}, s{sXw}", f"s_add_u32 s{sMW}, s{sMX}, 16384",
           f"s_add_u32 s{sT0}, s{sRd}, {SL}", f"s_cmp_eq_u32 s{sT0}, {NS*SL}", f"s_cselect_b32 s{sT0}, 0, s{sT0}",
           f"s_sub_u32 s{sDel}, s{sT0}, s{sRd}", f"s_mov_b32 s{sRd}, s{sT0}",
           f"v_add_u32 v{vXa}, s{sDel}, v{vXa}"] + [f"v_add_u32 v{vWa[q]}, s{sDel}, v{vWa[q]}" for q in range(4)]
    items = [(0.0, pre[:7])] + [(0.03, pre[7:10]), (0.09, pre[10:])]
    items += spread(reads(0, 0), 0.13, 0.78)
    dm = [advX() + [f"s_mov_b32 m0, s{sMX}"]] + [[x] for x in dmaX()]
    items += [(0.2, dm[0])] + spread(dm[1:], 0.27, 0.97)
    p.ext(interleave(mfmas(1), items))
    p("s_waitcnt lgkmcnt(0)")
    p(f"s_add_u32 s{sT}, s{sT}, 1")
    p(f"s_cmp_lt_u32 s{sT}, s{sN}")
    p("s_cbranch_scc1 L_k2_loop")
    stamp(p, cfg, 3)
    p("s_waitcnt vmcnt(0)")
    p(f"s_lshl_b32 s{sP}, s{sTile}, 16")
    p(f"s_lshl_b32 s{sT0}, s{s_w}, 14")
    p(f"s_add_u32 s{sP}, s{sP}, s{sT0}")
    p(f"s_add_u32 s{sP}, s{sP}, {P1_OFF}")
    p(f"s_lshl_b32 s{sT1}, s{sTile}, 7")
    p(f"s_add_u32 s{sT1}, s{sT1}, {FLAG_OFF}")
    p(f"s_cmp_eq_u32 s{s_role}, 1")
    p("s_cbranch_scc0 L_k2_final")
    p("s_nop 7")
    for q in range(4):
        for tt in range(4):
            a = acc(q, tt); t = acc(q, tt, TMP)
            for r in range(4):
                p(f"v_fma_f32 v{t+r}, v{a+r}, v{vOmg[tt]}, v{t+r}")
            idx = q * 4 + tt
            if idx % 4 == 0:
                p(f"s_add_u32 s{sT0}, s{sP}, {idx*1024}")
            p(f"buffer_store_dwordx4 v[{t}:{t+3}], v{vOX}, s[{sWS}:{sWS+3}], s{sT0} offen offset:{(idx%4)*1024} sc1")
    stamp(p, cfg, 4)
    p("s_waitcnt vmcnt(0)")
    p("s_barrier")
    stamp(p, cfg, 5)
    p(f"s_cmp_eq_u32 s{s_w}, 0")
    p("s_cbranch_scc0 L_k2_fin")
    p("v_mov_b32 v20, 1")
    p("v_mov_b32 v21, 0")
    p("v_cmp_eq_u32 vcc, 0, v0")
    p("s_and_saveexec_b64 s[60:61], vcc")
    p(f"buffer_store_dword v20, v21, s[{sWS}:{sWS+3}], s{sT1} offen sc1")
    p("s_mov_b64 exec, s[60:61]")
    p("s_branch L_k2_fin")
    p("L_k2_final:")
    p("v_mov_b32 v21, 0")
    p(f"s_mov_b32 s62, 0")
    p("L_k2_poll:")
    p(f"buffer_load_dword v20, v21, s[{sWS}:{sWS+3}], s{sT1} offen sc1")
    p("s_waitcnt vmcnt(0)")
    p("v_readfirstlane_b32 s63, v20")
    p("s_nop 3")
    p("s_cmp_eq_u32 s63, 1")
    p("s_cbranch_scc1 L_k2_got")
    p("s_add_u32 s62, s62, 1")
    p("s_cmp_lt_u32 s62, 200000")
    p("s_cbranch_scc0 L_k2_got")
    p("s_sleep 2")
    p("s_branch L_k2_poll")
    p("L_k2_got:")
    stamp(p, cfg, 4)
    for q in range(4):
        for tt in range(4):
            idx = q * 4 + tt; t = acc(q, tt, PL)
            if idx % 4 == 0:
                p(f"s_add_u32 s{sT0}, s{sP}, {idx*1024}")
            p(f"buffer_load_dwordx4 v[{t}:{t+3}], v{vOX}, s[{sWS}:{sWS+3}], s{sT0} offen offset:{(idx%4)*1024} sc1")
    p("v_and_b32 v20, 15, v0")
    p("v_lshrrev_b32 v21, 4, v0")
    p("v_lshlrev_b32 v22, 12, v20")
    p("v_and_b32 v23, 1, v21")
    p("v_lshlrev_b32 v23, 5, v23")
    p("v_add_u32 v22, v22, v23")
    p("v_lshrrev_b32 v23, 1, v21")
    p("v_lshlrev_b32 v23, 4, v23")
    p("v_add_u32 v22, v22, v23")
    p(f"s_lshl_b32 s{sT0}, s{s_mh}, 17")
    p(f"s_lshl_b32 s{sT1}, s{s_nh}, 7")
    p(f"s_add_u32 s{sT0}, s{sT0}, s{sT1}")
    p(f"v_add_u32 v22, s{sT0}, v22")
    p(f"s_lshl_b32 s60, s{s_mb}, 18")
    p(f"s_lshl_b32 s{sT1}, s{s_nb}, 8")
    p(f"s_add_u32 s60, s60, s{sT1}")
    p("s_add_u32 s61, s60, 65536")
    if cfg.get('perturb'):
        import struct
        bits = struct.unpack('<I', struct.pack('<f', cfg['perturb']))[0]
        p(f"s_or_b32 s62, s{sTile}, s{s_w}")
        p("s_cmp_eq_u32 s62, 0")
        p(f"s_cselect_b32 s62, {bits}, 0")
        p("v_mov_b32 v25, s62")
        p("v_cmp_eq_u32 vcc, 0, v0")
        p("v_cndmask_b32 v25, 0, v25, vcc")
    k = 0
    done = 0
    for pair in range(2):
        for tt in range(4):
            t = TMP + 4 * (k % 4); k += 1
            needidx = (2 * pair + 1) * 4 + tt
            p(f"s_waitcnt vmcnt({15 - needidx + done})")
            for half, q in enumerate((2 * pair, 2 * pair + 1)):
                a = acc(q, tt); pl = acc(q, tt, PL)
                for r in range(4):
                    p(f"v_fma_f32 v{a+r}, v{a+r}, v{vOmg[tt]}, v{pl+r}")
                if cfg.get('perturb') and pair == 0 and tt == 0 and half == 0:
                    p(f"v_add_f32 v{a}, v{a}, v25")
                p(f"v_cvt_pk_bf16_f32 v{t+2*half}, v{a}, v{a+1}")
                p(f"v_cvt_pk_bf16_f32 v{t+2*half+1}, v{a+2}, v{a+3}")
            p(f"v_permlane16_swap_b32 v{t}, v{t+2}")
            p(f"v_permlane16_swap_b32 v{t+1}, v{t+3}")
            so = "s60" if tt < 2 else "s61"
            p(f"buffer_store_dwordx4 v[{t}:{t+3}], v22, s[{sO}:{sO+3}], {so} offen offset:{(tt&1)*2048 + pair*64}")
            done += 1
    stamp(p, cfg, 5)
    p("L_k2_fin:")
    stamp_out(p, cfg, 1, sWS, s_w, "k2")
    p("L_k2_exit:")
    p("s_endpgm")
    return p
```

```python
from asmlib import *
from k1 import ACT_MB, G_OFF, SYNC_OFF, P1_OFF, WS_USED, KA, srd, stamp

sX, sW, sWS, sM, sO = 8, 12, 16, 20, 24
s_w, s_mh, s_nh = 28, 29, 30
s_mb, s_nb, sTile, sRb = 34, 35, 36, 37
sIt = 33
sKX, sKW, sXw = 38, 39, 40
sT0, sT1 = 50, 51
sW2lo, sW2hi = 42, 43
sP, sFlag, sCnt = 44, 45, 46
SL = 32768
vOX = 1
vOW = [2, 3, 4, 5]
vXa = [6, 7, 8]
vWa = [[9, 10, 11, 12], [13, 14, 15, 16], [17, 18, 19, 20]]
vG = [21, 22, 23, 24]; vOmg = [25, 26, 27, 28]
vT = [29, 30, 31]
ACC, TMP, PL = 32, 96, 160
def acc(q, tt, base=ACC): return base + (q * 4 + tt) * 4
def aX(sig, tt): return sig * 16 + tt * 4
def aW(sig, q): return 32 + sig * 16 + q * 4

def mfmas(sig):
    L = []
    for q in range(4):
        for tt in range(4):
            a = acc(q, tt); w = aW(sig, q); x = aX(sig, tt)
            L.append(f"v_mfma_f32_16x16x32_bf16 v[{a}:{a+3}], a[{w}:{w+3}], a[{x}:{x+3}], v[{a}:{a+3}]")
    return L
def reads(sig, h, u):
    win, o = u >> 1, (u & 1) * SL
    X = [f"ds_read_b128 a[{aX(sig,tt)}:{aX(sig,tt)+3}], v{vXa[win]} offset:{o + h*8192 + (tt>>1)*1024 + (tt&1)*256}" for tt in range(4)]
    W = []
    for q in range(4):
        for i in range(2):
            w = aW(sig, q) + 2 * i
            W.append(f"ds_read_b64_tr_b16 a[{w}:{w+1}], v{vWa[win][q]} offset:{o + h*8192 + i*512}")
    items = spread(X, 0, 1) + spread(W, 0, 1)
    items.sort(key=lambda t: t[0])
    return [x[1][0] for x in items]
MOD = {'X': '', 'W': '', 'P': ' sc1'}
def dmaX():
    return [f"buffer_load_dwordx4 v{vOX}, s[{sX}:{sX+3}], s{sKX} offen offset:{j*1024}{MOD['X']} lds" for j in range(4)]
def dmaW():
    return [f"buffer_load_dwordx4 v{vOW[j]}, s[{sW}:{sW+3}], s{sKW} offen offset:{j*1024}{MOD['W']} lds" for j in range(4)]

def poll(p, tag, addr_sgpr, target, srdreg=sWS, vreg=29):
    p(f"v_mov_b32 v{vreg+1}, 0")
    p("s_mov_b32 s62, 0")
    p(f"L_poll_{tag}:")
    p(f"buffer_load_dword v{vreg}, v{vreg+1}, s[{srdreg}:{srdreg+3}], {addr_sgpr} offen sc1")
    p("s_waitcnt vmcnt(0)")
    p(f"v_readfirstlane_b32 s63, v{vreg}")
    p("s_nop 3")
    p(f"s_cmp_ge_u32 s63, {target}")
    p(f"s_cbranch_scc1 L_got_{tag}")
    p("s_add_u32 s62, s62, 1")
    p("s_cmp_lt_u32 s62, 20000")
    p(f"s_cbranch_scc0 L_got_{tag}")
    p("s_sleep 1")
    p(f"s_branch L_poll_{tag}")
    p(f"L_got_{tag}:")

def gen_phase3(p, role, cfg):
    NS = cfg.get('NS3', 5)
    MOD['X'] = cfg.get('ntX3', ''); MOD['W'] = cfg.get('ntW3', ''); MOD['P'] = cfg.get('stP', ' sc1')
    n_early, n_final = cfg['n_early'], cfg['n_final']
    assert n_early + n_final == 72
    early = role == 'early'
    n = n_early if early else n_final
    tag = role
    nwin = (NS + 1) // 2
    p(f"s_mov_b32 s{sRb}, s31")
    p(f"s_load_dwordx2 s[4:5], s[0:1], {KA['wo']}")
    p(f"s_load_dwordx2 s[6:7], s[0:1], {KA['w2']}")
    p(f"s_load_dwordx2 s[54:55], s[0:1], {KA['b2']}")
    p(f"s_load_dwordx2 s[58:59], s[0:1], {KA['out']}")
    p.ext(cfg['map3'])
    p(f"s_lshl_b32 s{sTile}, s{s_mb}, 3")
    p(f"s_add_u32 s{sTile}, s{sTile}, s{s_nb}")
    p(f"s_lshl_b32 s{sXw}, s{s_w}, 12")
    p(f"v_lshlrev_b32 v{vOX}, 4, v0")
    p("v_lshrrev_b32 v20, 3, v0")
    p("v_and_b32 v21, 7, v0")
    p("v_and_b32 v22, 2, v20")
    p("v_lshlrev_b32 v23, 11, v20")
    p(f"s_lshl_b32 s{sT0}, s{s_w}, 15")
    p(f"s_lshl_b32 s{sT1}, s{s_nb}, 8")
    p(f"s_add_u32 s{sT0}, s{sT0}, s{sT1}")
    p(f"v_add_u32 v23, s{sT0}, v23")
    for jj in range(4):
        kgl, cc = jj >> 1, jj & 1
        p(f"v_or_b32 v24, {kgl << 2}, v22")
        p("v_xor_b32 v24, v21, v24")
        p("v_lshlrev_b32 v24, 4, v24")
        p("v_add_u32 v24, v24, v23")
        p(f"v_add_u32 v{vOW[jj]}, {kgl*8*2048 + cc*128 - jj*1024 + 4096}, v24")
    p("s_waitcnt lgkmcnt(0)")
    p(f"s_mov_b32 s{sX}, s{sWS}")
    p(f"s_mov_b32 s{sX+1}, s{sWS+1}")
    p(f"s_mov_b32 s{sX+2}, {WS_USED}")
    p(f"s_mov_b32 s{sX+3}, 0x00020000")
    srd(p, sM, 54, 55, 2048)
    srd(p, sO, 58, 59, 0x400000)
    p(f"s_sub_u32 s{sW2lo}, s6, 4096")
    p(f"s_subb_u32 s{sW2hi}, s7, 0")
    if early:
        srd(p, sW, 4, 5, 2097152, bias=4096)
        p(f"s_mov_b32 s{sKW}, 0")
        p(f"s_mov_b32 s{sKX}, 0")
    else:
        x0 = n_early - 16
        p(f"s_mov_b32 s{sW}, s{sW2lo}")
        p(f"s_mov_b32 s{sW+1}, s{sW2hi}")
        p(f"s_mov_b32 s{sW+2}, {7340032 + 4096}")
        p(f"s_mov_b32 s{sW+3}, 0x00020000")
        p(f"s_mov_b32 s{sKW}, {x0*64*2048}")
        p(f"s_mov_b32 s{sKX}, {n_early*16384}")
    p(f"s_mul_i32 s{sT0}, s{s_mb}, {ACT_MB}")
    p(f"s_add_u32 s{sKX}, s{sKX}, s{sT0}")
    p(f"s_add_u32 s{sKX}, s{sKX}, s{sXw}")
    for st in range(2):
        p(f"s_add_u32 m0, s{sXw}, {st*SL + 16384}")
        p("s_nop 0")
        p.ext(dmaW())
        p(f"s_add_u32 s{sKW}, s{sKW}, {64*2048}")
    npre = 8
    if not early:
        p("v_lshrrev_b32 v20, 4, v0")
        p("v_lshlrev_b32 v20, 3, v20")
        p(f"s_lshl_b32 s{sT0}, s{s_nb}, 8")
        p(f"s_lshl_b32 s{sT1}, s{s_nh}, 7")
        p(f"s_add_u32 s{sT0}, s{sT0}, s{sT1}")
        for q in range(4):
            p(f"buffer_load_dwordx2 v[{224+2*q}:{225+2*q}], v20, s[{sM}:{sM+3}], s{sT0} offen offset:{q*32}")
        npre += 4
    p("v_and_b32 v20, 15, v0")
    p("v_lshrrev_b32 v21, 4, v0")
    p("v_lshrrev_b32 v22, 1, v21")
    p("v_lshlrev_b32 v22, 12, v22")
    p("v_and_b32 v23, 1, v21")
    p("v_lshlrev_b32 v24, 9, v23")
    p("v_add_u32 v22, v22, v24")
    p("v_lshlrev_b32 v24, 4, v20")
    p("v_add_u32 v22, v22, v24")
    p(f"s_lshl_b32 s{sT0}, s{s_mh}, 11")
    p(f"v_add_u32 v{vXa[0]}, s{sT0}, v22")
    p("v_lshrrev_b32 v24, 2, v0")
    p("v_and_b32 v24, 3, v24")
    p("v_and_b32 v25, 3, v0")
    p("v_lshrrev_b32 v26, 1, v25")
    p("v_and_b32 v27, 2, v24")
    p("v_lshlrev_b32 v28, 2, v23")
    p("v_or_b32 v27, v27, v28")
    p("v_lshlrev_b32 v28, 11, v21")
    p("v_lshlrev_b32 v29, 7, v24")
    p("v_add_u32 v28, v28, v29")
    p("v_and_b32 v29, 1, v25")
    p("v_lshlrev_b32 v29, 3, v29")
    p("v_add_u32 v28, v28, v29")
    p(f"s_lshl_b32 s{sT0}, s{s_nh}, 10")
    p(f"s_add_u32 s{sT0}, s{sT0}, 16384")
    p(f"v_add_u32 v28, s{sT0}, v28")
    for q in range(4):
        p(f"v_or_b32 v29, {2*q}, v26")
        p("v_xor_b32 v29, v29, v27")
        p("v_lshlrev_b32 v29, 4, v29")
        p(f"v_add_u32 v{vWa[0][q]}, v28, v29")
    for j in range(1, nwin):
        p(f"v_add_u32 v{vXa[j]}, {j*65536}, v{vXa[0]}")
        for q in range(4):
            p(f"v_add_u32 v{vWa[j][q]}, {j*65536}, v{vWa[0][q]}")
    p(f"s_waitcnt vmcnt({npre})")
    stamp(p, cfg, 3)
    p("s_barrier")
    p(f"s_cmp_lg_u32 s{s_w}, 0")
    p(f"s_cbranch_scc1 L_p3_nopub_{tag}")
    srd(p, 4, 100, 101, 256)
    poll(p, f"init_{tag}", "0", 256, srdreg=4)
    p(f"s_lshl_b32 s{sT0}, s{sRb}, 7")
    p(f"s_add_u32 s{sT0}, s{sT0}, s41")
    p("v_mov_b32 v29, 1")
    p("v_mov_b32 v30, 0")
    p("v_cmp_eq_u32 vcc, 0, v0")
    p("s_and_saveexec_b64 s[72:73], vcc")
    p(f"buffer_atomic_add v29, v30, s[{sWS}:{sWS+3}], s{sT0} offen sc1")
    p("s_mov_b64 exec, s[72:73]")
    p(f"s_lshr_b32 s{sT0}, s{s_mb}, 1")
    p(f"s_lshl_b32 s{sT0}, s{sT0}, 7")
    p(f"s_add_u32 s{sCnt}, s{sT0}, {SYNC_OFF + (0 if early else 8*128)}")
    poll(p, f"cnt_{tag}", f"s{sCnt}", 16)
    p(f"L_p3_nopub_{tag}:")
    if early:
        for a in range(ACC, ACC + 64, 2):
            p(f"v_mov_b64 v[{a}:{a+1}], 0")
    else:
        p(f"s_waitcnt vmcnt(0)")
        for q in range(4):
            src = 224 + 2 * q
            p(f"v_lshlrev_b32 v22, 16, v{src}")
            p(f"v_and_b32 v23, 0xffff0000, v{src}")
            p(f"v_lshlrev_b32 v24, 16, v{src+1}")
            p(f"v_and_b32 v25, 0xffff0000, v{src+1}")
            for tt in range(4):
                a = acc(q, tt)
                p(f"v_mov_b64 v[{a}:{a+1}], v[22:23]")
                p(f"v_mov_b64 v[{a+2}:{a+3}], v[24:25]")
    p("s_barrier")
    stamp(p, cfg, 4)
    def X(st):
        p(f"s_add_u32 m0, s{sXw}, {st*SL}"); p("s_nop 0"); p.ext(dmaX())
        if st < NS - 1: p(f"s_add_u32 s{sKX}, s{sKX}, 16384")
    def W(st):
        p(f"s_add_u32 m0, s{sXw}, {st*SL + 16384}"); p("s_nop 0"); p.ext(dmaW())
        if st < NS - 2: p(f"s_add_u32 s{sKW}, s{sKW}, {64*2048}")
    X(0); X(1)
    for st in range(2, NS):
        X(st)
        if st < NS - 1: W(st)
    def gate_loads():
        p("v_and_b32 v29, 15, v0")
        p("v_lshrrev_b32 v30, 3, v29")
        p("v_lshlrev_b32 v30, 7, v30")
        p("v_and_b32 v29, 7, v29")
        p("v_lshlrev_b32 v29, 3, v29")
        p("v_add_u32 v29, v29, v30")
        p(f"s_lshl_b32 s{sT0}, s{s_mb}, 10")
        p(f"s_lshl_b32 s{sT1}, s{s_mh}, 9")
        p(f"s_add_u32 s{sT0}, s{sT0}, s{sT1}")
        p(f"s_add_u32 s{sT0}, s{sT0}, {G_OFF}")
        for tt in range(4):
            p(f"buffer_load_dword v{vG[tt]}, v29, s[{sWS}:{sWS+3}], s{sT0} offen offset:{(tt>>1)*256 + (tt&1)*4} sc1")
    def omg():
        for tt in range(4):
            p(f"v_sub_f32 v{vOmg[tt]}, 1.0, v{vG[tt]}")
            p(f"v_cvt_pk_bf16_f32 v{vOmg[tt]}, v{vOmg[tt]}, v{vOmg[tt]}")
            p(f"v_lshlrev_b32 v{vOmg[tt]}, 16, v{vOmg[tt]}")
    extra = 0
    if early:
        gate_loads(); extra = 4
    nafter = 4 * (2 * NS - 3) - 4 + extra
    p(f"s_waitcnt vmcnt({nafter})")
    p("s_barrier")
    p.ext(reads(0, 0, 0))
    p(f"s_mov_b32 s{sIt}, 0")
    if early:
        p(f"s_add_u32 s{sCnt}, s{sCnt}, {8*128}")
        p(f"v_mov_b32 v{vT[1]}, 0")
    p("s_waitcnt lgkmcnt(0)")
    p(f"L_p3_loop_{tag}:")
    side = []
    def at(t): return divmod(t, NS)
    for u in range(NS):
        if early and u == at(16)[1]:
            p(f"s_cmp_eq_u32 s{sIt}, {at(16)[0]}")
            p(f"s_cbranch_scc1 L_p3_sw")
            p("L_p3_sw_ret:")
        pre0 = [f"s_add_u32 s{sKW}, s{sKW}, {64*2048}"]
        if early and u == at(17 - NS)[1]:
            pre0 += [f"s_cmp_eq_u32 s{sIt}, {at(17 - NS)[0]}",
                     f"s_cselect_b32 s{sW}, s{sW2lo}, s{sW}", f"s_cselect_b32 s{sW+1}, s{sW2hi}, s{sW+1}",
                     f"s_cselect_b32 s{sKW}, 0, s{sKW}", f"s_cselect_b32 s{sW+2}, {7340032 + 4096}, s{sW+2}"]
        if u == at(n - NS + 1)[1]:
            pre0 += [f"s_cmp_eq_u32 s{sIt}, {at(n - NS + 1)[0]}", f"s_cselect_b32 s{sW+2}, 0, s{sW+2}"]
        pre0.append(f"s_add_u32 m0, s{sXw}, {((u - 1) % NS)*SL + 16384}")
        items = spread(reads(1, 1, u), 0.0, 0.72)
        items += [(0.04, pre0)] + spread(dmaW(), 0.15, 0.95)
        tpoll = 16 - NS - 3
        if early and u == at(tpoll)[1]:
            items += [(0.97, [f"s_cmp_eq_u32 s{sIt}, {at(tpoll)[0]}", f"s_cbranch_scc0 L_p3_nopf_{u}",
                              f"buffer_load_dword v{vT[0]}, v{vT[1]}, s[{sWS}:{sWS+3}], s{sCnt} offen sc1", f"L_p3_nopf_{u}:"])]
        p.ext(interleave(mfmas(0), items))
        p(f"s_waitcnt vmcnt({8*(NS-2)}) lgkmcnt(0)")
        p("s_barrier")
        if early and u == at(16 - NS)[1]:
            p(f"s_cmp_eq_u32 s{sIt}, {at(16 - NS)[0]}")
            p(f"s_cbranch_scc1 L_p3_chk")
            p("L_p3_chk_ret:")
        pre1 = [f"s_add_u32 s{sKX}, s{sKX}, 16384"]
        if u == at(n - NS)[1]:
            pre1 += [f"s_cmp_eq_u32 s{sIt}, {at(n - NS)[0]}", f"s_cselect_b32 s{sX+2}, 0, s{sX+2}"]
        pre1.append(f"s_add_u32 m0, s{sXw}, {u*SL}")
        items = spread(reads(0, 0, (u + 1) % NS), 0.0, 0.72)
        items += [(0.04, pre1)] + spread(dmaX(), 0.15, 0.95)
        p.ext(interleave(mfmas(1), items))
        p("s_waitcnt lgkmcnt(0)")
        if u == at(n - 1)[1]:
            p(f"s_cmp_eq_u32 s{sIt}, {at(n - 1)[0]}")
            p(f"s_cbranch_scc1 L_p3_done_{tag}")
        if u == NS - 1:
            p(f"s_add_u32 s{sIt}, s{sIt}, 1")
            p(f"s_branch L_p3_loop_{tag}")
    if early:
        p("L_p3_sw:")
        p("s_nop 7")
        omg()
        for q in range(4):
            for tt in range(4):
                a = acc(q, tt); t = acc(q, tt, TMP)
                for r in range(4):
                    p(f"v_mul_f32 v{t+r}, v{a+r}, v{vG[tt]}")
        for a in range(ACC, ACC + 64, 2):
            p(f"v_mov_b64 v[{a}:{a+1}], 0")
        p("s_nop 1")
        p("s_branch L_p3_sw_ret")
        p("L_p3_chk:")
        p(f"v_readfirstlane_b32 s63, v{vT[0]}")
        p("s_nop 3")
        p("s_cmp_ge_u32 s63, 16")
        p("s_cbranch_scc1 L_p3_chk_ret")
        poll(p, "cntH_late", f"s{sCnt}", 16, vreg=vT[0])
        p("s_branch L_p3_chk_ret")
    p(f"L_p3_done_{tag}:")
    stamp(p, cfg, 5)
    p("s_waitcnt vmcnt(0)")
    p(f"s_lshl_b32 s{sP}, s{sTile}, 16")
    p(f"s_lshl_b32 s{sT0}, s{s_w}, 14")
    p(f"s_add_u32 s{sP}, s{sP}, s{sT0}")
    p(f"s_add_u32 s{sP}, s{sP}, {P1_OFF}")
    p(f"s_lshl_b32 s{sFlag}, s{sTile}, 7")
    p(f"s_add_u32 s{sFlag}, s{sFlag}, {SYNC_OFF + 128*128}")
    if early:
        p("s_nop 7")
        bf = cfg.get('p1bf16', 1)
        for q in range(4):
            for tt in range(4):
                a = acc(q, tt); t = acc(q, tt, TMP)
                for r in range(4):
                    p(f"v_fma_f32 v{t+r}, v{a+r}, v{vOmg[tt]}, v{t+r}")
                idx = q * 4 + tt
                if not bf:
                    if idx % 4 == 0:
                        p(f"s_add_u32 s{sT0}, s{sP}, {idx*1024}")
                    p(f"buffer_store_dwordx4 v[{t}:{t+3}], v{vOX}, s[{sWS}:{sWS+3}], s{sT0} offen offset:{(idx%4)*1024}{MOD['P']}")
                elif tt & 1:
                    j = idx >> 1; d = PL + 4 * j; t0 = acc(q, tt - 1, TMP)
                    p(f"v_cvt_pk_bf16_f32 v{d}, v{t0}, v{t0+1}")
                    p(f"v_cvt_pk_bf16_f32 v{d+1}, v{t0+2}, v{t0+3}")
                    p(f"v_cvt_pk_bf16_f32 v{d+2}, v{t}, v{t+1}")
                    p(f"v_cvt_pk_bf16_f32 v{d+3}, v{t+2}, v{t+3}")
                    if j % 4 == 0:
                        p(f"s_add_u32 s{sT0}, s{sP}, {j*1024}")
                    p(f"buffer_store_dwordx4 v[{d}:{d+3}], v{vOX}, s[{sWS}:{sWS+3}], s{sT0} offen offset:{(j%4)*1024}{MOD['P']}")
        p("s_waitcnt vmcnt(0)")
        p("s_barrier")
        stamp(p, cfg, 6)
        p(f"s_cmp_eq_u32 s{s_w}, 0")
        p("s_cbranch_scc0 L_fin")
        p("v_mov_b32 v20, 1")
        p("v_mov_b32 v21, 0")
        p("v_cmp_eq_u32 vcc, 0, v0")
        p("s_and_saveexec_b64 s[60:61], vcc")
        p(f"buffer_store_dword v20, v21, s[{sWS}:{sWS+3}], s{sFlag} offen sc1")
        p("s_mov_b64 exec, s[60:61]")
        p("s_branch L_fin")
        return
    poll(p, "pair", f"s{sFlag}", 1)
    stamp(p, cfg, 6)
    bf = cfg.get('p1bf16', 1)
    if bf:
        for j in range(8):
            d = PL + 4 * j
            if j % 4 == 0:
                p(f"s_add_u32 s{sT0}, s{sP}, {j*1024}")
            p(f"buffer_load_dwordx4 v[{d}:{d+3}], v{vOX}, s[{sWS}:{sWS+3}], s{sT0} offen offset:{(j%4)*1024} sc1")
    else:
        for q in range(4):
            for tt in range(4):
                idx = q * 4 + tt; t = acc(q, tt, PL)
                if idx % 4 == 0:
                    p(f"s_add_u32 s{sT0}, s{sP}, {idx*1024}")
                p(f"buffer_load_dwordx4 v[{t}:{t+3}], v{vOX}, s[{sWS}:{sWS+3}], s{sT0} offen offset:{(idx%4)*1024} sc1")
    gate_loads()
    p("v_and_b32 v20, 15, v0")
    p("v_lshrrev_b32 v29, 4, v0")
    p("v_lshlrev_b32 v2, 12, v20")
    p("v_and_b32 v3, 1, v29")
    p("v_lshlrev_b32 v3, 5, v3")
    p("v_add_u32 v2, v2, v3")
    p("v_lshrrev_b32 v3, 1, v29")
    p("v_lshlrev_b32 v3, 4, v3")
    p("v_add_u32 v2, v2, v3")
    p(f"s_lshl_b32 s{sT0}, s{s_mh}, 17")
    p(f"s_lshl_b32 s{sT1}, s{s_nh}, 7")
    p(f"s_add_u32 s{sT0}, s{sT0}, s{sT1}")
    p(f"v_add_u32 v2, s{sT0}, v2")
    p(f"s_lshl_b32 s60, s{s_mb}, 18")
    p(f"s_lshl_b32 s{sT1}, s{s_nb}, 8")
    p(f"s_add_u32 s60, s60, s{sT1}")
    p("s_add_u32 s61, s60, 65536")
    p("s_waitcnt vmcnt(0)")
    omg()
    k = 0
    for pair in range(2):
        for tt in range(4):
            t = TMP + 4 * (k % 4); k += 1
            for half, q in enumerate((2 * pair, 2 * pair + 1)):
                a = acc(q, tt); pl = acc(q, tt, PL)
                if bf:
                    src = PL + 4 * ((q * 4 + tt) >> 1) + 2 * (tt & 1)
                    u0 = 224 + 4 * (k % 2 * 2 + half)
                    p(f"v_lshlrev_b32 v{u0}, 16, v{src}")
                    p(f"v_and_b32 v{u0+1}, 0xffff0000, v{src}")
                    p(f"v_lshlrev_b32 v{u0+2}, 16, v{src+1}")
                    p(f"v_and_b32 v{u0+3}, 0xffff0000, v{src+1}")
                    pl = u0
                for r in range(4):
                    p(f"v_fma_f32 v{a+r}, v{a+r}, v{vOmg[tt]}, v{pl+r}")
                p(f"v_cvt_pk_bf16_f32 v{t+2*half}, v{a}, v{a+1}")
                p(f"v_cvt_pk_bf16_f32 v{t+2*half+1}, v{a+2}, v{a+3}")
            p(f"v_permlane16_swap_b32 v{t}, v{t+2}")
            p(f"v_permlane16_swap_b32 v{t+1}, v{t+3}")
            so = "s60" if tt < 2 else "s61"
            p(f"buffer_store_dwordx4 v[{t}:{t+3}], v2, s[{sO}:{sO+3}], {so} offen offset:{(tt&1)*2048 + pair*64}{cfg.get('stO', '')}")
```

```python
import sys
from asmlib import *
import k1, k3
from build import HEADER, kd, NAME

def default_cfg():
    cfg = {'fused': 1, 'st1': ' sc1', 'pf_w': 1}
    cfg['map1'] = [f"s_and_b32 s4, s2, 7", "s_lshr_b32 s5, s2, 3", "s_and_b32 s6, s4, 3",
                   f"s_lshr_b32 s{k1.s_rb}, s5, 2", "s_and_b32 s5, s5, 3", "s_lshl_b32 s6, s6, 2",
                   f"s_add_u32 s{k1.s_ct}, s6, s5", "s_cmp_ge_u32 s4, 4"]
    cfg['k0w1'] = [f"s_mov_b32 s{k1.sKa}, 0"]
    cfg['k0qkv'] = [f"s_mov_b32 s{k1.sKa}, 0"]
    cfg['map3'] = ["s_and_b32 s60, s2, 3", "s_lshr_b32 s61, s2, 3", "s_lshl_b32 s60, s60, 2",
                   "s_lshr_b32 s63, s61, 3", f"s_add_u32 s{k3.s_mb}, s60, s63", f"s_and_b32 s{k3.s_nb}, s61, 7"]
    cfg['role'] = ["s_and_b32 s60, s2, 7", "s_cmp_ge_u32 s60, 4"]
    if True:
        cfg['map1_mix'] = ["s_and_b32 s4, s2, 7", "s_lshr_b32 s5, s2, 3", "s_and_b32 s6, s4, 1", "s_lshl_b32 s6, s6, 2",
                           "s_lshr_b32 s7, s5, 2", "s_and_b32 s7, s7, 3", f"s_add_u32 s{k1.s_rb}, s6, s7",
                           "s_lshr_b32 s4, s4, 1", "s_lshl_b32 s4, s4, 2", "s_and_b32 s6, s5, 3", f"s_add_u32 s{k1.s_ct}, s4, s6",
                           "s_cmp_lt_u32 s5, 16"]
    cfg['NS3'] = 5
    cfg['n_early'] = 36; cfg['n_final'] = 36
    return cfg

def build(cfg, name=NAME + "_kernel"):
    p = Prog()
    p(f".globl {name}")
    p(".p2align 8")
    p(f".type {name},@function")
    p(f"{name}:")
    p("s_cmp_ge_u32 s2, 256")
    p("s_cbranch_scc1 L_exit")
    k1.stamp(p, cfg, 0)
    k1.ids(p)
    p.ext(cfg['map1'])
    p("s_cbranch_scc1 L_w1")
    k1.gen_qkv(p, cfg)
    k1.gen_w1(p, cfg)
    p("L_p3_entry:")
    p.ext(cfg['role'])
    p("s_cbranch_scc1 L_p3_final")
    k3.gen_phase3(p, 'early', cfg)
    p("L_p3_final:")
    k3.gen_phase3(p, 'final', cfg)
    p("L_fin:")
    k1.stamp_out(p, cfg, 0, k1.sWS, k1.s_w, "f")
    p("L_exit:")
    p("s_endpgm")
    l, c = fix_hazards(p.L)
    out = HEADER
    out += "; @launch grid=(256,1,1) block=(256,1,1) lds=163840\n"
    out += '.amdgcn_target "amdgcn-amd-amdhsa--gfx950"\n.text\n'
    out += "\n".join(l) + "\n"
    out += '.section .rodata,"a"\n.p2align 6\n' + kd(name)
    return out, c

if __name__ == "__main__":
    cfg = default_cfg()
    for a in sys.argv[2:]:
        k, v = a.split("=", 1); cfg[k] = eval(v)
    if cfg.get('mix'): cfg['map1'] = cfg['map1_mix']
    txt, c = build(cfg)
    open(sys.argv[1], "w").write(txt)
    print("nops inserted", c, "bytes", len(txt))
```

```python
from asmlib import *

ACT_MB = 288 * 4096
G_OFF = 0x1200000
FLAG_OFF = 0x1204000
SYNC_OFF = 0x1208000
P1_OFF = 0x1210000
STAMP_OFF = P1_OFF + 128 * 65536
WS_USED = STAMP_OFF + 65536

KA = dict(Ax=0, wqkv=8, wo=16, Bx=24, w1=32, b1=40, w2=48, b2=56, gw=64, out=72, dbg=80, ws=88)

sX, sW, sWS, sM = 8, 12, 16, 20
s_w, s_mh, s_nh, s_rb, s_ct = 28, 29, 30, 31, 32
s_it = 33
sMB = [34, 35, 36, 37]
sKb, sKB, sKa, sKA0, sKA1, sKH = 38, 39, 40, 41, 42, 43
sMA, sMA1, sMH = 44, 45, 46
sRd, sDel, sDelH, sT0, sT1, sRow = 47, 48, 49, 50, 51, 52
sAw, sHw = 53, 54
sSel = [56, 58, 60, 62]
sP, sPb, sPh = 64, 65, 66
sC = 67
vLane = 0
vOA = [1, 2, 3, 4]
vOB = [5, 6, 7]
vOH = 8
vXa = [9, 10]
vWa = [11, 12]
vWh = 13
def aX(sig, T): return sig * 40 + T * 4
def aW(sig, p): return 80 + sig * 28 + p * 4

def stamp(p, cfg, i):
    if cfg.get('stamps'):
        p(f"s_memrealtime s[{76+2*i}:{77+2*i}]")

def stamp_out(p, cfg, kern, srdreg, wavereg, tag):
    if not cfg.get('stamps'): return
    p("s_waitcnt vmcnt(0)")
    p("s_memrealtime s[90:91]")
    p("s_waitcnt lgkmcnt(0)")
    p(f"s_cmp_lg_u32 s{wavereg}, 0")
    p(f"s_cbranch_scc1 L_nostamp_{tag}")
    if cfg.get('stamps') == 3:
        p("s_cmp_eq_u32 s2, 4")
        p(f"s_cbranch_scc0 L_nostamp_{tag}")
        p("s_sub_u32 s75, s90, s76")
        p(f"s_cmp_gt_u32 s75, {int(cfg['thr']*100)}")
        p(f"s_cbranch_scc0 L_nostamp_{tag}")
        p("L_diag_spin:")
        p("s_memrealtime s[78:79]")
        p("s_waitcnt lgkmcnt(0)")
        p("s_sub_u32 s75, s78, s90")
        p("s_cmp_lt_u32 s75, 10000")
        p("s_cbranch_scc1 L_diag_spin")
        p(f"s_branch L_nostamp_{tag}")
    if cfg.get('stamps') == 2:
        p("s_cmp_eq_u32 s2, 0")
        p("s_cselect_b32 s74, 4, 0")
        p("s_cmp_eq_u32 s2, 4")
        p("s_cselect_b32 s74, 32, s74")
        p("s_cmp_eq_u32 s74, 0")
        p(f"s_cbranch_scc1 L_nostamp_{tag}")
        srd(p, 4, 100, 101, 256)
        for i in range(1, 8):
            p(f"s_sub_u32 s75, s{76+2*i}, s76")
            p(f"v_mov_b32 v{200+i}, s75")
            p("v_mov_b32 v208, 0")
            p(f"buffer_store_dword v{200+i}, v208, s[4:7], s74 offen offset:{(i-1)*4}")
        p("s_waitcnt vmcnt(0)")
        p(f"s_branch L_nostamp_{tag}")
    p(f"s_lshl_b32 s74, s2, 6")
    p(f"s_add_u32 s74, s74, {STAMP_OFF + kern * 16384}")
    for i in range(8):
        p(f"v_mov_b32 v{200+i}, s{76+2*i}")
    p("v_mov_b32 v208, 0")
    p(f"buffer_store_dwordx4 v[200:203], v208, s[{srdreg}:{srdreg+3}], s74 offen")
    p(f"buffer_store_dwordx4 v[204:207], v208, s[{srdreg}:{srdreg+3}], s74 offen offset:16")
    p("s_waitcnt vmcnt(0)")
    p(f"L_nostamp_{tag}:")

def srd(p, s, lo, hi, size, bias=0):
    if bias:
        p(f"s_sub_u32 s{s}, s{lo}, {bias}")
        p(f"s_subb_u32 s{s+1}, s{hi}, 0")
    else:
        p(f"s_mov_b32 s{s}, s{lo}")
        p(f"s_mov_b32 s{s+1}, s{hi}")
    p(f"s_mov_b32 s{s+2}, {size + bias}")
    p(f"s_mov_b32 s{s+3}, 0x00020000")

class Path:
    def __init__(self, kind, mh=None, cfg=None):
        self.kind = kind
        self.mh = mh
        self.cfg = cfg or {}
        if kind == 'w1':
            self.pitch = 7168; self.S = 32768; self.Abase = 61440; self.Hbase = 49152
            self.acc0 = 32; self.np = 7
        else:
            self.pitch = 6144; self.S = 36864; self.Abase = 49152
            self.acc0 = 48; self.np = 6
    def acc(self, p, T):
        return self.acc0 + (p * 8 + T) * 4
    def accH(self, b, pp):
        return 240 + (b * 2 + pp) * 4

    def mfmas(self, sig):
        L = []
        for p in range(self.np):
            for T in range(8):
                a = self.acc(p, T); w = aW(sig, p); x = aX(sig, T)
                if self.kind == 'qkv' and p >= 4:
                    L.append(f"v_mfma_f32_16x16x32_bf16 v[{a}:{a+3}], a[{x}:{x+3}], a[{w}:{w+3}], v[{a}:{a+3}]")
                else:
                    L.append(f"v_mfma_f32_16x16x32_bf16 v[{a}:{a+3}], a[{w}:{w+3}], a[{x}:{x+3}], v[{a}:{a+3}]")
        if self.kind == 'qkv':
            for b in range(2):
                for pp in range(2):
                    a = self.accH(b, pp); x = aX(sig, 8 + pp)
                    if self.mh == 0:
                        w = aW(sig, 2 + b)
                        L.append(f"v_mfma_f32_16x16x32_bf16 v[{a}:{a+3}], a[{w}:{w+3}], a[{x}:{x+3}], v[{a}:{a+3}]")
                    else:
                        w = aW(sig, 4 + b)
                        L.append(f"v_mfma_f32_16x16x32_bf16 v[{a}:{a+3}], a[{x}:{x+3}], a[{w}:{w+3}], v[{a}:{a+3}]")
        return L

    def reads(self, sig, h, bslot):
        L = []
        for T in range(8):
            x = aX(sig, T)
            L.append(f"ds_read_b128 a[{x}:{x+3}], v{vXa[h]} offset:{T*2048}")
        if self.kind == 'qkv':
            for pp in range(2):
                x = aX(sig, 8 + pp)
                L.append(f"ds_read_b128 a[{x}:{x+3}], v{vXa[h]} offset:{32768 - 16384*self.mh + pp*2048}")
        W = []
        for p in range(6):
            cc, b = p >> 1, p & 1
            w = aW(sig, p)
            for i in range(2):
                W.append(f"ds_read_b64_tr_b16 a[{w+2*i}:{w+2*i+1}], v{vWa[b]} offset:{bslot*12288 + cc*1024 + i*512}")
        if self.kind == 'w1':
            w = aW(sig, 6)
            for i in range(2):
                W.append(f"ds_read_b64_tr_b16 a[{w+2*i}:{w+2*i+1}], v{vWh} offset:{h*2048 + i*256}")
        out = []
        items = spread(L, 0, 1) + spread(W, 0, 1)
        items.sort(key=lambda t: t[0])
        return [x[1][0] for x in items]

    def dmaB(self, u):
        return [f"buffer_load_dwordx4 v{vOB[cc]}, s[{sW}:{sW+3}], s{sKB} offen offset:{cc*1024}{self.cfg.get('ntW', '')} lds" for cc in range(3)]
    def dmaA(self, grp):
        so = sKA0 if grp == 0 else sKA1
        return [f"buffer_load_dwordx4 v{vOA[j]}, s[{sX}:{sX+3}], s{so} offen offset:{j*1024}{self.cfg.get('ntX', '')} lds" for j in range(4)]
    def dmaH(self):
        if self.kind == 'w1':
            return [f"buffer_load_dwordx4 v{vOH}, s[{sW}:{sW+3}], s{sKH} offen{self.cfg.get('ntW', '')} lds"]
        return [f"buffer_load_dwordx4 v{vOH}, s[{sX}:{sX+3}], s{sKa} offen lds"]
    def advB(self):
        return [f"s_add_u32 s{sKb}, s{sKb}, 32", f"s_and_b32 s{sKb}, s{sKb}, 1023", f"s_mul_i32 s{sKB}, s{sKb}, {self.pitch}"]
    def advA(self):
        L = [f"s_add_u32 s{sKa}, s{sKa}, 128", f"s_and_b32 s{sKa}, s{sKa}, 2047",
             f"s_add_u32 s{sKA0}, s{sKa}, s{sRow}", f"s_add_u32 s{sKA1}, s{sKA0}, 65536"]
        if self.kind == 'w1':
            L.append(f"s_mul_i32 s{sKH}, s{sKa}, {self.pitch // 2}")
        return L
    def slot_dma(self):
        L = [f"s_add_u32 s{sMA}, s{sRd}, s{sAw}", f"s_add_u32 s{sMA1}, s{sMA}, 4096"]
        if self.kind == 'w1':
            L += [f"s_lshr_b32 s{sT0}, s{sRd}, 3", f"s_add_u32 s{sMH}, s{sT0}, s{sHw}"]
        else:
            L += [f"s_add_u32 s{sMH}, s{sRd}, s{sHw}"]
        return L
    def slot_adv(self):
        S = self.S
        L = [f"s_add_u32 s{sT0}, s{sRd}, {S}", f"s_cmp_eq_u32 s{sT0}, {3*S}", f"s_cselect_b32 s{sT0}, 0, s{sT0}",
             f"s_sub_u32 s{sDel}, s{sT0}, s{sRd}", f"s_mov_b32 s{sRd}, s{sT0}"]
        V = [f"v_add_u32 v{vXa[0]}, s{sDel}, v{vXa[0]}", f"v_add_u32 v{vXa[1]}, s{sDel}, v{vXa[1]}"]
        if self.kind == 'w1':
            L.append(f"s_ashr_i32 s{sDelH}, s{sDel}, 3")
            V.append(f"v_add_u32 v{vWh}, s{sDelH}, v{vWh}")
        return L, V

    def step(self, u):
        sig = u & 1
        mf = self.mfmas(sig)
        n = len(mf)
        items = []
        rd_start = 0.0
        if u & 1:
            L, V = self.slot_adv()
            pre = self.slot_dma() + L + V
            items.append((0.0, pre[:4]))
            items += spread(pre[4:] , 0.0, 0.06)
            items += spread(self.advA(), 0.06, 0.12)
            rd_start = 0.08
        rd = self.reads(sig ^ 1, (u + 1) & 1, (u + 1) & 3)
        items += spread(rd, rd_start, 0.82)
        dm = []
        B = self.dmaB(u)
        dm.append(self.advB() + [f"s_mov_b32 m0, s{sMB[u]}"])
        dm += [[x] for x in B]
        if u & 1:
            A = self.dmaA(0)
            dm.append([f"s_mov_b32 m0, s{sMA}"]); dm += [[x] for x in A]
        else:
            A = self.dmaA(1)
            dm.append([f"s_mov_b32 m0, s{sMA1}"]); dm += [[x] for x in A]
            dm.append([f"s_mov_b32 m0, s{sMH}"]); dm += [[x] for x in self.dmaH()]
        items += spread(dm, 0.14, 0.97)
        out = interleave(mf, items)
        out.append(f"s_waitcnt vmcnt({16 if self.cfg.get('pf_w') == 1 else 15}) lgkmcnt(0)")
        out.append("s_barrier")
        return out

def ids(p):
    p("v_lshrrev_b32 v1, 6, v0")
    p("v_and_b32 v0, 63, v0")
    p("s_nop 0")
    p(f"v_readfirstlane_b32 s{s_w}, v1")
    p("s_nop 3")
    p(f"s_lshr_b32 s{s_mh}, s{s_w}, 1")
    p(f"s_and_b32 s{s_nh}, s{s_w}, 1")

def setup_common(p, P, cfg):
    p("v_lshrrev_b32 v14, 3, v0")
    p("v_and_b32 v15, 7, v0")
    p("v_and_b32 v16, 6, v14")
    p("v_xor_b32 v16, v15, v16")
    p("v_lshlrev_b32 v16, 4, v16")
    p("v_lshlrev_b32 v17, 12, v14")
    p("v_add_u32 v17, v17, v16")
    p(f"s_lshl_b32 s{sT0}, s{s_w}, 17")
    p(f"v_add_u32 v17, s{sT0}, v17")
    for j in range(4):
        c = (16 * (j & 1) + (j >> 1)) * 2048 - j * 1024
        p(f"v_add_u32 v{vOA[j]}, {c}, v17")
    p(f"s_and_b32 s{sT0}, s{s_w}, 1")
    p(f"s_lshl_b32 s{sT0}, s{sT0}, 2")
    p("v_and_b32 v18, 2, v14")
    p(f"v_or_b32 v18, s{sT0}, v18")
    p("v_xor_b32 v18, v15, v18")
    p("v_lshlrev_b32 v18, 4, v18")
    p(f"s_lshl_b32 s{sT0}, s{s_w}, 3")
    p(f"v_add_u32 v19, s{sT0}, v14")
    p(f"s_mov_b32 s{sT1}, {P.pitch}")
    p(f"v_mul_lo_u32 v19, v19, s{sT1}")
    p("v_add_u32 v19, v19, v18")
    for cc in range(3):
        p(f"s_add_u32 s{sT0}, s{sPb}, {cc * P.ccstride - cc * 1024 + 4096}")
        p(f"v_add_u32 v{vOB[cc]}, s{sT0}, v19")
    p("v_and_b32 v20, 15, v0")
    p("v_lshrrev_b32 v21, 4, v0")
    p("v_and_b32 v22, 6, v20")
    p("v_xor_b32 v22, v21, v22")
    p("v_lshlrev_b32 v22, 4, v22")
    p("v_lshlrev_b32 v23, 7, v20")
    p("v_add_u32 v22, v22, v23")
    p(f"s_lshl_b32 s{sT0}, s{s_mh}, 14")
    p(f"s_add_u32 s{sT0}, s{sT0}, {P.Abase}")
    p(f"v_add_u32 v{vXa[0]}, s{sT0}, v22")
    p(f"v_xor_b32 v{vXa[1]}, 64, v{vXa[0]}")
    p("v_lshrrev_b32 v14, 2, v0")
    p("v_and_b32 v14, 3, v14")
    p("v_and_b32 v15, 3, v0")
    p("v_lshrrev_b32 v16, 1, v15")
    p("v_and_b32 v17, 2, v14")
    p("v_and_b32 v18, 1, v21")
    p("v_lshlrev_b32 v19, 2, v18")
    p("v_or_b32 v17, v17, v19")
    p("v_mul_u32_u24 v19, 3072, v21")
    p("v_lshlrev_b32 v23, 7, v14")
    p("v_add_u32 v19, v19, v23")
    p("v_and_b32 v23, 1, v15")
    p("v_lshlrev_b32 v23, 3, v23")
    p("v_add_u32 v19, v19, v23")
    for b in range(2):
        p(f"s_lshl_b32 s{sT0}, s{s_nh}, 2")
        p(f"s_add_u32 s{sT0}, s{sT0}, {2*b}")
        p(f"v_or_b32 v23, s{sT0}, v16")
        p("v_xor_b32 v23, v23, v17")
        p("v_lshlrev_b32 v23, 4, v23")
        p(f"v_add_u32 v{vWa[b]}, v19, v23")
    for u in range(4):
        p(f"s_mul_i32 s{sMB[u]}, s{s_w}, 3072")
        if u: p(f"s_add_u32 s{sMB[u]}, s{sMB[u]}, {u*12288}")
    p(f"s_lshl_b32 s{sAw}, s{s_w}, 13")
    p(f"s_add_u32 s{sAw}, s{sAw}, {P.Abase}")
    p(f"s_lshl_b32 s{sRow}, s{s_rb}, 19")

def prologue_dma(p, P, cfg):
    p(f"s_lshr_b32 s{sKb}, s{sKa}, 1")
    def setA():
        p(f"s_add_u32 s{sKA0}, s{sKa}, s{sRow}")
        p(f"s_add_u32 s{sKA1}, s{sKA0}, 65536")
        if P.kind == 'w1':
            p(f"s_mul_i32 s{sKH}, s{sKa}, {P.pitch // 2}")
    def nextA():
        p(f"s_add_u32 s{sKa}, s{sKa}, 128"); p(f"s_and_b32 s{sKa}, s{sKa}, 2047"); setA()
    def slot(k):
        p(f"s_mov_b32 s{sRd}, {k * P.S}")
        p.ext(P.slot_dma())
    def A(grp):
        p(f"s_mov_b32 m0, s{sMA if grp == 0 else sMA1}"); p("s_nop 0"); p.ext(P.dmaA(grp))
    def H():
        p(f"s_mov_b32 m0, s{sMH}"); p("s_nop 0"); p.ext(P.dmaH())
    def B(u, first=False):
        if first: p(f"s_mul_i32 s{sKB}, s{sKb}, {P.pitch}")
        else: p.ext(P.advB())
        p(f"s_mov_b32 m0, s{sMB[u]}"); p("s_nop 0"); p.ext(P.dmaB(u))
    setA(); slot(0)
    A(0); A(1); H(); B(0, True)
    B(1); nextA(); slot(1); A(0)
    B(2); A(1); H()
    B(3); nextA(); slot(2); A(0)
    if cfg.get('pf_w') == 1:
        p("buffer_load_dword v28, v29, s[92:95], s55 offen"); p("s_add_u32 s55, s55, 256")
    p(f"s_mov_b32 s{sRd}, 0")

def pf_setup(p, cfg):
    if not cfg.get('pf_w'): return
    p(f"s_load_dwordx2 s[72:73], s[0:1], {KA['wo']}")
    p(f"s_load_dwordx2 s[74:75], s[0:1], {KA['w2']}")
    p(f"s_lshl_b32 s{sT0}, s2, 2")
    p(f"s_add_u32 s{sT0}, s{sT0}, s{s_w}")
    p(f"s_mul_i32 s71, s{sT0}, {56*128}")
    p("v_lshlrev_b32 v30, 7, v0")
    p("v_mov_b32 v28, 0x7ff00000")
    p(f"v_cmp_gt_u32 vcc, {8 if cfg['pf_w'] == 1 else 56}, v0")
    p("v_cndmask_b32 v30, v28, v30, vcc")
    p(f"s_lshl_b32 s55, s{sT0}, 11")
    p("v_lshlrev_b32 v29, 7, v0")
    p(f"v_cmp_gt_u32 vcc, {2 if cfg['pf_w'] == 1 else 16}, v0")
    p("v_cndmask_b32 v29, v28, v29, vcc")
    p("s_waitcnt lgkmcnt(0)")
    srd(p, 92, 72, 73, 2097152)
    srd(p, 96, 74, 75, 7340032)

def main_loop(p, P, tag):
    pf = 1 if P.cfg.get('pf_w') == 1 else 0
    p(f"s_waitcnt vmcnt({22 + pf})")
    if P.cfg.get('fused'):
        srd(p, 4, 100, 101, 256)
        p("s_lshr_b32 s24, s2, 3")
        p("s_and_b32 s24, s24, 7")
        p(f"s_cmp_eq_u32 s{s_w}, 0")
        p("s_cselect_b32 s24, s24, -1")
        p.ext(P.cfg.get('pf_it', ["s_lshr_b32 s25, s2, 3", "s_and_b32 s26, s2, 7", "s_add_u32 s25, s25, s26", "s_mul_i32 s26, s25, 37", "s_lshr_b32 s26, s26, 8", "s_mul_i32 s26, s26, 7", "s_sub_u32 s25, s25, s26"]))
        p("v_mov_b32 v17, 1")
        p("v_mov_b32 v18, 0")
    p("s_barrier")
    stamp(p, P.cfg, 1)
    p.ext(P.reads(0, 0, 0))
    p(f"s_waitcnt vmcnt({15 + pf}) lgkmcnt(0)")
    p("s_barrier")
    p(f"s_mov_b32 s{s_it}, 0")
    p(f"L_loop_{tag}:")
    p(f"s_cmp_eq_u32 s{s_it}, 7")
    p(f"s_cselect_b32 s{sX+2}, 0, s{sX+2}")
    p(f"s_cselect_b32 s{sW+2}, 0, s{sW+2}")
    for u in range(4):
        st = P.step(u)
        if P.cfg.get('pf_w') == 2 and u == 0:
            k = len(st) // 4
            st[k:k] = [f"s_cmp_eq_u32 s{s_it}, s25", f"s_cbranch_scc0 L_nopf_{tag}",
                       "buffer_load_dword v28, v30, s[96:99], s71 offen", "buffer_load_dword v28, v29, s[92:95], s55 offen", f"L_nopf_{tag}:"]
        if P.cfg.get('pf_w') == 1 and u in (1, 3):
            k = len(st) // 2
            if u == 1:
                st[k:k] = ["buffer_load_dword v28, v30, s[96:99], s71 offen", "s_add_u32 s71, s71, 1024"]
            else:
                st[k:k] = ["buffer_load_dword v28, v29, s[92:95], s55 offen", "s_add_u32 s55, s55, 256"]
        if P.cfg.get('fused') and u == 2:
            k = len(st) // 3
            st[k:k] = [f"s_cmp_eq_u32 s{s_it}, s24", f"s_cbranch_scc0 L_noinit_{tag}", "s_mov_b64 exec, 1",
                       "buffer_atomic_add v17, v18, s[4:7], 0 offen sc1", "s_mov_b64 exec, -1", f"L_noinit_{tag}:"]
        p.ext(st)
    p(f"s_add_u32 s{s_it}, s{s_it}, 1")
    p(f"s_cmp_lt_u32 s{s_it}, 8")
    p(f"s_cbranch_scc1 L_loop_{tag}")
    stamp(p, P.cfg, 2)
    p("s_waitcnt vmcnt(0)")
    p("s_barrier")


def zero_line(p, cfg):
    if not cfg.get('fused'): return
    p(f"s_lshl_b32 s{sT0}, s2, 7")
    p(f"s_add_u32 s{sT0}, s{sT0}, {SYNC_OFF}")
    p("v_mov_b32 v14, 0")
    p("v_lshlrev_b32 v15, 2, v0")
    p("v_and_b32 v15, 127, v15")
    p(f"buffer_store_dword v14, v15, s[{sWS}:{sWS+3}], s{sT0} offen sc1")

def gen_w1(p, cfg):
    P = Path('w1', cfg=cfg); P.ccstride = 128
    p("L_w1:")
    p(f"s_load_dwordx2 s[4:5], s[0:1], {KA['Ax']}")
    p(f"s_load_dwordx2 s[6:7], s[0:1], {KA['w1']}")
    p(f"s_load_dwordx2 s[24:25], s[0:1], {KA['b1']}")
    p(f"s_load_dwordx2 s[26:27], s[0:1], {KA['ws']}")
    p(f"s_load_dwordx2 s[100:101], s[0:1], {KA['dbg']}")
    p(f"s_mul_i32 s{sT0}, s{s_ct}, 224")
    p(f"s_and_b32 s{sT1}, s{s_ct}, 1")
    p(f"s_lshl_b32 s68, s{sT1}, 5")
    p(f"s_add_u32 s68, s68, s{sT0}")
    p(f"s_cmp_eq_u32 s{sT1}, 1")
    p(f"s_cselect_b32 s69, 0, 192")
    p(f"s_add_u32 s69, s69, s{sT0}")
    p(f"s_lshl_b32 s{sPb}, s68, 1")
    p("s_waitcnt lgkmcnt(0)")
    srd(p, sX, 4, 5, 0x400000)
    srd(p, sW, 6, 7, 7340032, bias=4096)
    srd(p, sWS, 26, 27, WS_USED)
    srd(p, sM, 24, 25, 7168)
    zero_line(p, cfg)
    setup_common(p, P, cfg)
    p("v_lshrrev_b32 v25, 2, v0")
    p("v_and_b32 v26, 3, v0")
    p("v_lshrrev_b32 v27, 3, v25")
    p("v_lshlrev_b32 v27, 1, v27")
    p("v_xor_b32 v26, v26, v27")
    p("v_lshlrev_b32 v26, 4, v26")
    p(f"s_lshl_b32 s{sT0}, s{s_w}, 4")
    p(f"v_add_u32 v25, s{sT0}, v25")
    p(f"s_mov_b32 s{sT1}, {P.pitch}")
    p(f"v_mul_lo_u32 v25, v25, s{sT1}")
    p("v_add_u32 v25, v25, v26")
    p(f"s_lshl_b32 s{sT0}, s69, 1")
    p(f"s_add_u32 s{sT0}, s{sT0}, 4096")
    p(f"v_add_u32 v{vOH}, s{sT0}, v25")
    p("v_lshrrev_b32 v25, 1, v21")
    p("v_lshlrev_b32 v25, 10, v25")
    p("v_lshlrev_b32 v26, 3, v18")
    p("v_add_u32 v26, v26, v14")
    p("v_lshlrev_b32 v26, 6, v26")
    p("v_add_u32 v25, v25, v26")
    p(f"s_lshl_b32 s{sT0}, s{s_nh}, 1")
    p(f"v_or_b32 v26, s{sT0}, v16")
    p("v_lshlrev_b32 v27, 1, v18")
    p("v_xor_b32 v26, v26, v27")
    p("v_lshlrev_b32 v26, 4, v26")
    p("v_add_u32 v25, v25, v26")
    p("v_and_b32 v26, 1, v15")
    p("v_lshlrev_b32 v26, 3, v26")
    p("v_add_u32 v25, v25, v26")
    p(f"v_add_u32 v{vWh}, {P.Hbase}, v25")
    p(f"s_lshl_b32 s{sHw}, s{s_w}, 10")
    p(f"s_add_u32 s{sHw}, s{sHw}, {P.Hbase}")
    p("v_lshlrev_b32 v31, 3, v21")
    p(f"s_lshl_b32 s{sT0}, s{s_nh}, 6")
    p(f"s_add_u32 s{sT0}, s{sT0}, s{sPb}")
    for pp in range(6):
        cc, b = pp >> 1, pp & 1
        p(f"buffer_load_dwordx2 v[{14+2*pp}:{15+2*pp}], v31, s[{sM}:{sM+3}], s{sT0} offen offset:{cc*128 + b*32}")
    p(f"s_lshl_b32 s{sT1}, s{s_nh}, 5")
    p(f"s_lshl_b32 s{sT0}, s69, 1")
    p(f"s_add_u32 s{sT1}, s{sT1}, s{sT0}")
    p(f"buffer_load_dwordx2 v[26:27], v31, s[{sM}:{sM+3}], s{sT1} offen")
    p.ext(cfg['k0w1'])
    pf_setup(p, cfg)
    prologue_dma(p, P, cfg)
    p(f"s_waitcnt vmcnt({34 + (1 if cfg.get('pf_w') == 1 else 0)})")
    for pp in range(7):
        src = 14 + 2 * pp
        p(f"v_lshlrev_b32 v252, 16, v{src}")
        p(f"v_and_b32 v253, 0xffff0000, v{src}")
        p(f"v_lshlrev_b32 v254, 16, v{src+1}")
        p(f"v_and_b32 v255, 0xffff0000, v{src+1}")
        for T in range(8):
            a = P.acc(pp, T)
            if a == 252: continue
            p(f"v_mov_b64 v[{a}:{a+1}], v[252:253]")
            p(f"v_mov_b64 v[{a+2}:{a+3}], v[254:255]")
    main_loop(p, P, "w1")
    p(f"s_lshl_b32 s{sT0}, s{s_rb}, 1")
    p(f"s_add_u32 s{sT0}, s{sT0}, s{s_mh}")
    p(f"s_mul_i32 s{sT0}, s{sT0}, {ACT_MB}")
    p(f"s_lshr_b32 s{sT1}, s68, 4")
    p(f"s_lshl_b32 s70, s{s_nh}, 1")
    p(f"s_add_u32 s{sT1}, s{sT1}, s70")
    p(f"s_add_u32 s{sT1}, s{sT1}, 64")
    p(f"s_lshl_b32 s{sT1}, s{sT1}, 12")
    p(f"s_add_u32 s{sPb}, s{sT0}, s{sT1}")
    p(f"s_lshr_b32 s{sT1}, s69, 4")
    p(f"s_add_u32 s{sT1}, s{sT1}, s{s_nh}")
    p(f"s_add_u32 s{sT1}, s{sT1}, 64")
    p(f"s_lshl_b32 s{sT1}, s{sT1}, 12")
    p(f"s_add_u32 s{sPh}, s{sT0}, s{sT1}")
    p("v_lshlrev_b32 v1, 4, v0")
    k = 0
    for pp in range(7):
        if pp < 6:
            cc, b = pp >> 1, pp & 1
            p(f"s_add_u32 s{sP}, s{sPb}, {(4*cc + b) * 4096}")
        else:
            p(f"s_mov_b32 s{sP}, s{sPh}")
        for R in range(4):
            t = 14 + 4 * (k % 4); k += 1
            a0 = P.acc(pp, 2 * R); a1 = P.acc(pp, 2 * R + 1)
            for a in (a0, a1):
                for r in range(4): p(f"v_max_f32 v{a+r}, 0, v{a+r}")
            for a in (a0, a1):
                p(f"v_pk_mul_f32 v[{a}:{a+1}], v[{a}:{a+1}], v[{a}:{a+1}]")
                p(f"v_pk_mul_f32 v[{a+2}:{a+3}], v[{a+2}:{a+3}], v[{a+2}:{a+3}]")
            p(f"v_cvt_pk_bf16_f32 v{t}, v{a0}, v{a0+1}")
            p(f"v_cvt_pk_bf16_f32 v{t+1}, v{a0+2}, v{a0+3}")
            p(f"v_cvt_pk_bf16_f32 v{t+2}, v{a1}, v{a1+1}")
            p(f"v_cvt_pk_bf16_f32 v{t+3}, v{a1+2}, v{a1+3}")
            p(f"v_permlane16_swap_b32 v{t}, v{t+2}")
            p(f"v_permlane16_swap_b32 v{t+1}, v{t+3}")
            p(f"buffer_store_dwordx4 v[{t}:{t+3}], v1, s[{sWS}:{sWS+3}], s{sP} offen offset:{R*1024}{cfg.get('st1', '')}")
    if cfg.get('fused'):
        p(f"s_mov_b32 s41, {SYNC_OFF + 8*128}")
    p("s_branch L_p3_entry" if cfg.get('fused') else "s_branch L_k1_end")

def gen_qkv(p, cfg):
    P0 = Path('qkv', mh=0, cfg=cfg); P0.ccstride = 2048
    p("L_qkv:")
    p(f"s_load_dwordx2 s[4:5], s[0:1], {KA['Ax']}")
    p(f"s_load_dwordx2 s[6:7], s[0:1], {KA['wqkv']}")
    p(f"s_load_dwordx2 s[24:25], s[0:1], {KA['gw']}")
    p(f"s_load_dwordx2 s[26:27], s[0:1], {KA['ws']}")
    p(f"s_load_dwordx2 s[100:101], s[0:1], {KA['dbg']}")
    p(f"s_lshl_b32 s{sPb}, s{s_ct}, 7")
    p("s_waitcnt lgkmcnt(0)")
    srd(p, sX, 4, 5, 0x400000)
    srd(p, sW, 6, 7, 6291456, bias=4096)
    srd(p, sWS, 26, 27, WS_USED)
    srd(p, sM, 24, 25, 2048)
    zero_line(p, cfg)
    setup_common(p, P0, cfg)
    p("v_lshrrev_b32 v25, 3, v0")
    p("v_and_b32 v26, 7, v0")
    p("v_and_b32 v27, 6, v25")
    p("v_xor_b32 v26, v26, v27")
    p("v_lshlrev_b32 v26, 4, v26")
    p("v_lshlrev_b32 v25, 1, v25")
    p(f"s_lshl_b32 s{sT0}, s{s_rb}, 8")
    p(f"s_lshl_b32 s{sT1}, s{s_nh}, 4")
    p(f"s_add_u32 s{sT0}, s{sT0}, s{sT1}")
    p(f"s_add_u32 s{sT0}, s{sT0}, s{s_mh}")
    p(f"s_sub_u32 s{sT0}, s{sT0}, 32")
    p(f"v_add_u32 v25, s{sT0}, v25")
    p("v_max_i32 v25, 0, v25")
    p("v_lshlrev_b32 v25, 11, v25")
    p(f"v_add_u32 v{vOH}, v25, v26")
    p(f"s_lshl_b32 s{sHw}, s{s_w}, 10")
    p(f"s_add_u32 s{sHw}, s{sHw}, {P0.Abase + 32768}")
    p.ext(cfg['k0qkv'])
    pf_setup(p, cfg)
    prologue_dma(p, P0, cfg)
    for a in range(48, 256, 2):
        p(f"v_mov_b64 v[{a}:{a+1}], 0")
    p(f"s_cmp_eq_u32 s{s_mh}, 1")
    p("s_cbranch_scc1 L_qkv_m1")
    for mh in range(2):
        P = Path('qkv', mh=mh, cfg=cfg); P.ccstride = 2048
        if mh == 1: p("L_qkv_m1:")
        main_loop(p, P, f"qkv{mh}")
        qkv_epilogue(p, P, cfg)
        if cfg.get('fused'):
            p(f"s_mov_b32 s41, {SYNC_OFF}")
        p("s_branch L_p3_entry" if cfg.get('fused') else "s_branch L_k1_end")

def qkv_epilogue(p, P, cfg):
    mh = P.mh
    Q = lambda b, T: P.acc(b, T)
    K = lambda b, T: P.acc(2 + b, T)
    V = lambda b, T: P.acc(4 + b, T)
    Vp = lambda b, pp, idx: 8 + ((b * 2 + pp) * 5 + idx) * 2
    Kprev = lambda pp: 240 + 4 * pp
    for b in range(2):
        for T in range(8):
            I, pp = T >> 1, T & 1
            d = Vp(b, pp, I + 1); a = V(b, T)
            p(f"v_cvt_pk_bf16_f32 v{d}, v{a}, v{a+1}")
            p(f"v_cvt_pk_bf16_f32 v{d+1}, v{a+2}, v{a+3}")
    p("v_lshrrev_b32 v1, 4, v0")
    p(f"s_lshl_b32 s{sT0}, s{s_rb}, 8")
    p(f"s_lshl_b32 s{sT1}, s{s_ct}, 4")
    p(f"s_add_u32 s{sT0}, s{sT0}, s{sT1}")
    p(f"s_lshl_b32 s{sT1}, s{s_w}, 2")
    p(f"s_add_u32 s70, s{sT0}, s{sT1}")
    p(f"v_add_u32 v1, s70, v1")
    p("v_lshlrev_b32 v2, 11, v1")
    p("v_and_b32 v3, 15, v0")
    p("v_lshlrev_b32 v3, 4, v3")
    p("v_add_u32 v2, v2, v3")
    p(f"s_mov_b32 s{sX+2}, 0x400000")
    for m in range(8):
        p(f"buffer_load_dwordx4 v[{176+4*m}:{179+4*m}], v2, s[{sX}:{sX+3}], 0 offen offset:{m*256}")
    for m in range(8):
        p(f"buffer_load_dwordx4 v[{208+4*m}:{211+4*m}], v3, s[{sM}:{sM+3}], 0 offen offset:{m*256}")
    p("v_lshrrev_b32 v7, 4, v1")
    p("v_lshlrev_b32 v7, 7, v7")
    p("v_and_b32 v1, 15, v1")
    p("v_lshlrev_b32 v1, 2, v1")
    p("v_add_u32 v7, v7, v1")
    for T in range(8):
        for X in (Q, K):
            a = X(0, T); c = X(1, T)
            p(f"v_cvt_pk_bf16_f32 v{a}, v{a}, v{a+1}")
            p(f"v_cvt_pk_bf16_f32 v{a+1}, v{a+2}, v{a+3}")
            p(f"v_cvt_pk_bf16_f32 v{a+2}, v{c}, v{c+1}")
            p(f"v_cvt_pk_bf16_f32 v{a+3}, v{c+2}, v{c+3}")
    p("v_lshlrev_b32 v2, 4, v0")
    p(f"s_lshl_b32 s{sT0}, s{s_nh}, 13")
    p(f"v_add_u32 v2, s{sT0}, v2")
    p("v_lshlrev_b32 v3, 3, v0")
    p(f"v_add_u32 v3, s{sT0}, v3")
    if mh == 0:
        for pp in range(2):
            a = P.accH(0, pp); c = P.accH(1, pp)
            p(f"v_cvt_pk_bf16_f32 v{a}, v{a}, v{a+1}")
            p(f"v_cvt_pk_bf16_f32 v{a+1}, v{a+2}, v{a+3}")
            p(f"v_cvt_pk_bf16_f32 v{a+2}, v{c}, v{c+1}")
            p(f"v_cvt_pk_bf16_f32 v{a+3}, v{c+2}, v{c+3}")
        for pp in range(2):
            a = K(0, 6 + pp)
            p(f"ds_write_b128 v2, v[{a}:{a+3}] offset:{pp*1024}")
        for b in range(2):
            for pp in range(2):
                a = Vp(b, pp, 4)
                p(f"ds_write_b64 v3, v[{a}:{a+1}] offset:{2048 + (b*2+pp)*512}")
        p("s_waitcnt lgkmcnt(0)")
        p("s_barrier")
        for b in range(2):
            for pp in range(2):
                a = Vp(b, pp, 0)
                p(f"ds_read_b64 v[{a}:{a+1}], v3 offset:{4096 + (b*2+pp)*512}")
    else:
        for b in range(2):
            for pp in range(2):
                a = P.accH(b, pp)
                p(f"v_cvt_pk_bf16_f32 v{a}, v{a}, v{a+1}")
                p(f"v_cvt_pk_bf16_f32 v{a+1}, v{a+2}, v{a+3}")
                p(f"ds_write_b64 v3, v[{a}:{a+1}] offset:{4096 + (b*2+pp)*512}")
        p("s_waitcnt lgkmcnt(0)")
        p("s_barrier")
        for pp in range(2):
            a = Kprev(pp)
            p(f"ds_read_b128 v[{a}:{a+3}], v2 offset:{pp*1024}")
        for b in range(2):
            for pp in range(2):
                a = Vp(b, pp, 0)
                p(f"ds_read_b64 v[{a}:{a+1}], v3 offset:{2048 + (b*2+pp)*512}")
    vB = [248, 249, 250, 251]; vB0 = [252, 253, 254, 255]; vMp = [4, 5]; vMc = [6, 2]
    p("v_and_b32 v80, 15, v0")
    p("v_lshrrev_b32 v81, 4, v0")
    p("v_lshlrev_b32 v81, 2, v81")
    p("v_add_u32 v82, 9, v80")
    p("v_subrev_u32 v83, 7, v80")
    p(f"s_mov_b32 s{sT0}, 0xf149f2ca")
    p(f"s_cmp_eq_u32 s{s_rb}, 0")
    p(f"s_cselect_b32 s{sT1}, 1, 0")
    for r in range(4):
        p(f"v_add_u32 v84, {r}, v81")
        p(f"v_cmp_ge_i32 s[{sSel[r]}:{sSel[r]+1}], v84, v82")
        p("v_cmp_ge_i32 vcc, v84, v83")
        p("v_cmp_le_i32 s[72:73], v84, v80")
        p("s_nop 4")
        p("s_and_b64 s[72:73], s[72:73], vcc")
        p(f"s_or_b64 s[74:75], s[72:73], s[{sSel[r]}:{sSel[r]+1}]")
        p(f"v_mov_b32 v85, s{sT0}")
        p(f"v_cndmask_b32 v{vB[r]}, v85, 0, s[74:75]")
        if mh == 0:
            p(f"s_cmp_eq_u32 s{sT1}, 1")
            p("s_cselect_b64 s[74:75], s[72:73], s[74:75]")
        p(f"v_cndmask_b32 v{vB0[r]}, v85, 0, s[74:75]")
    p("v_mov_b32 v85, 0xffff")
    p("v_mov_b32 v86, 0xffff0000")
    for q in range(2):
        p(f"v_cndmask_b32 v87, 0, v85, s[{sSel[2*q]}:{sSel[2*q]+1}]")
        p(f"v_cndmask_b32 v88, 0, v86, s[{sSel[2*q+1]}:{sSel[2*q+1]+1}]")
        p(f"v_or_b32 v{vMp[q]}, v87, v88")
        p(f"v_not_b32 v{vMc[q]}, v{vMp[q]}")
    p(f"s_mov_b32 s{sC}, 0x3e8293ee")
    p(f"s_lshl_b32 s{sT0}, s{s_rb}, 1")
    p(f"s_add_u32 s{sT0}, s{sT0}, {mh}")
    p(f"s_mul_i32 s{sT0}, s{sT0}, {ACT_MB}")
    p(f"s_lshl_b32 s{sT1}, s{s_ct}, 1")
    p(f"s_add_u32 s{sT1}, s{sT1}, s{s_nh}")
    p(f"s_lshl_b32 s{sT1}, s{sT1}, 13")
    p(f"s_add_u32 s{sPb}, s{sT0}, s{sT1}")
    p(f"s_add_u32 s{sPh}, s{sPb}, 4096")
    p("v_lshlrev_b32 v1, 4, v0")
    p("s_waitcnt lgkmcnt(0)")
    def block(I, pp, t):
        T = 2 * I + pp
        L = []
        q = Q(0, T); kc = K(0, T); kp = Kprev(pp) if I == 0 else K(0, T - 2)
        Sp, Sc, Pf, m, x, l = t, t + 4, t + 8, t + 12, t + 13, t + 14
        bias = vB0 if I == 0 else vB
        L.append(f"v_mfma_f32_16x16x32_bf16 v[{Sp}:{Sp+3}], v[{kp}:{kp+3}], v[{q}:{q+3}], 0")
        L.append(f"v_mfma_f32_16x16x32_bf16 v[{Sc}:{Sc+3}], v[{kc}:{kc+3}], v[{q}:{q+3}], 0")
        for r in range(4):
            L.append(f"v_cndmask_b32 v{Sc+r}, v{Sc+r}, v{Sp+r}, s[{sSel[r]}:{sSel[r]+1}]")
        for r in range(4):
            L.append(f"v_fma_f32 v{Sc+r}, v{Sc+r}, s{sC}, v{bias[r]}")
        L.append(f"v_max3_f32 v{m}, v{Sc}, v{Sc+1}, v{Sc+2}")
        L.append(f"v_max_f32 v{m}, v{m}, v{Sc+3}")
        for sw in ("v_permlane16_swap_b32", "v_permlane32_swap_b32"):
            L.append(f"v_mov_b32 v{x}, v{m}")
            L.append(f"{sw} v{x}, v{m}")
            L.append(f"v_max_f32 v{m}, v{x}, v{m}")
        for r in range(4):
            L.append(f"v_sub_f32 v{Sc+r}, v{Sc+r}, v{m}")
        for r in range(4):
            L.append(f"v_exp_f32 v{Sc+r}, v{Sc+r}")
        L.append(f"v_add_f32 v{l}, v{Sc}, v{Sc+1}")
        L.append(f"v_add_f32 v{x}, v{Sc+2}, v{Sc+3}")
        L.append(f"v_add_f32 v{l}, v{l}, v{x}")
        for sw in ("v_permlane16_swap_b32", "v_permlane32_swap_b32"):
            L.append(f"v_mov_b32 v{x}, v{l}")
            L.append(f"{sw} v{x}, v{l}")
            L.append(f"v_add_f32 v{l}, v{x}, v{l}")
        L.append(f"v_rcp_f32 v{l}, v{l}")
        for r in range(4):
            L.append(f"v_mul_f32 v{Sc+r}, v{Sc+r}, v{l}")
        L.append(f"v_cvt_pk_bf16_f32 v{m}, v{Sc}, v{Sc+1}")
        L.append(f"v_cvt_pk_bf16_f32 v{x}, v{Sc+2}, v{Sc+3}")
        L.append(f"v_and_b32 v{Pf}, v{m}, v{vMp[0]}")
        L.append(f"v_and_b32 v{Pf+1}, v{x}, v{vMp[1]}")
        L.append(f"v_and_b32 v{Pf+2}, v{m}, v{vMc[0]}")
        L.append(f"v_and_b32 v{Pf+3}, v{x}, v{vMc[1]}")
        for b in range(2):
            va = Vp(b, pp, I); o = Sp if b == 0 else Sc
            L.append(f"v_mfma_f32_16x16x32_bf16 v[{o}:{o+3}], v[{va}:{va+3}], v[{Pf}:{Pf+3}], 0")
        return L
    tA, tB = 80, 96
    for I in range(4):
        la = block(I, 0, tA); lb = block(I, 1, tB)
        for x, y in zip(la, lb):
            p(x); p(y)
        st = 144 + 8 * (I & 1)
        for b in range(2):
            oa = tA + 4 * b; ob = tB + 4 * b; d = st + 4 * b
            p(f"v_cvt_pk_bf16_f32 v{d}, v{oa}, v{oa+1}")
            p(f"v_cvt_pk_bf16_f32 v{d+1}, v{oa+2}, v{oa+3}")
            p(f"v_cvt_pk_bf16_f32 v{d+2}, v{ob}, v{ob+1}")
            p(f"v_cvt_pk_bf16_f32 v{d+3}, v{ob+2}, v{ob+3}")
            p(f"v_permlane16_swap_b32 v{d}, v{d+2}")
            p(f"v_permlane16_swap_b32 v{d+1}, v{d+3}")
            p(f"buffer_store_dwordx4 v[{d}:{d+3}], v1, s[{sWS}:{sWS+3}], s{sPb if b == 0 else sPh} offen offset:{I*1024}{cfg.get('st1', '')}")
    p("s_waitcnt vmcnt(8)")
    p("v_mov_b32 v80, 0")
    p("v_mov_b32 v81, 0")
    for m in range(8):
        for r in range(4):
            p(f"v_dot2c_f32_bf16 v{80 + (r & 1)}, v{176+4*m+r}, v{208+4*m+r}")
    p("v_add_f32 v80, v80, v81")
    for k in (8, 4, 2, 1):
        p(f"v_add_f32_dpp v80, v80, v80 row_ror:{k} row_mask:0xf bank_mask:0xf")
    p("v_cvt_pk_bf16_f32 v80, v80, v80")
    p("v_lshlrev_b32 v80, 16, v80")
    p("v_mul_f32 v80, 0xbfb8aa3b, v80")
    p("v_exp_f32 v80, v80")
    p("v_add_f32 v80, 1.0, v80")
    p("v_rcp_f32 v80, v80")
    p("v_cvt_pk_bf16_f32 v80, v80, v80")
    p("v_lshlrev_b32 v80, 16, v80")
    p("v_and_b32 v81, 15, v0")
    p("v_cmp_eq_u32 vcc, 0, v81")
    p(f"s_mov_b32 s{sT0}, {G_OFF}")
    p("s_and_saveexec_b64 s[72:73], vcc")
    p(f"buffer_store_dword v80, v7, s[{sWS}:{sWS+3}], s{sT0} offen{cfg.get('st1', '')}")
    p("s_mov_b64 exec, s[72:73]")

def gen_k1(name, cfg):
    p = Prog()
    p(f".globl {name}")
    p(".p2align 8")
    p(f".type {name},@function")
    p(f"{name}:")
    p("s_cmp_ge_u32 s2, 256")
    p("s_cbranch_scc1 L_k1_exit")
    stamp(p, cfg, 0)
    ids(p)
    p.ext(cfg['map1'])
    p("s_cbranch_scc1 L_w1")
    gen_qkv(p, cfg)
    gen_w1(p, cfg)
    p("L_k1_end:")
    stamp(p, cfg, 4)
    stamp_out(p, cfg, 0, sWS, s_w, "k1")
    p("s_cmp_ge_u32 s2, 128")
    p("s_cbranch_scc1 L_k1_exit")
    p(f"s_cmp_lg_u32 s{s_w}, 0")
    p("s_cbranch_scc1 L_k1_exit")
    p(f"s_lshl_b32 s{sT0}, s2, 7")
    p(f"s_add_u32 s{sT0}, s{sT0}, {FLAG_OFF}")
    p("v_mov_b32 v2, 0")
    p("v_lshlrev_b32 v3, 2, v0")
    p("v_cmp_gt_u32 vcc, 32, v0")
    p("s_and_saveexec_b64 s[72:73], vcc")
    p(f"buffer_store_dword v2, v3, s[{sWS}:{sWS+3}], s{sT0} offen")
    p("s_mov_b64 exec, s[72:73]")
    p("L_k1_exit:")
    p("s_endpgm")
    return p
```

```python
import sys
from asmlib import *
import k1, k3
from build import HEADER, kd, NAME

def default_cfg():
    cfg = {'fused': 1, 'st1': ' sc1', 'pf_w': 2, 'mix': 1, 'stO': ' sc0 sc1', 'pf_code': 1}
    cfg['map1'] = [f"s_and_b32 s4, s2, 7", "s_lshr_b32 s5, s2, 3", "s_and_b32 s6, s4, 3",
                   f"s_lshr_b32 s{k1.s_rb}, s5, 2", "s_and_b32 s5, s5, 3", "s_lshl_b32 s6, s6, 2",
                   f"s_add_u32 s{k1.s_ct}, s6, s5", "s_cmp_ge_u32 s4, 4"]
    cfg['k0w1'] = [f"s_mov_b32 s{k1.sKa}, 0"]
    cfg['k0qkv'] = [f"s_mov_b32 s{k1.sKa}, 0"]
    cfg['map3'] = ["s_and_b32 s60, s2, 3", "s_lshr_b32 s61, s2, 3", "s_lshl_b32 s60, s60, 2",
                   "s_lshr_b32 s63, s61, 3", f"s_add_u32 s{k3.s_mb}, s60, s63", f"s_and_b32 s{k3.s_nb}, s61, 7"]
    cfg['role'] = ["s_and_b32 s60, s2, 7", "s_cmp_ge_u32 s60, 4"]
    if True:
        cfg['map1_mix'] = ["s_and_b32 s4, s2, 7", "s_lshr_b32 s5, s2, 3", "s_and_b32 s6, s4, 1", "s_lshl_b32 s6, s6, 2",
                           "s_lshr_b32 s7, s5, 2", "s_and_b32 s7, s7, 3", f"s_add_u32 s{k1.s_rb}, s6, s7",
                           "s_lshr_b32 s4, s4, 1", "s_lshl_b32 s4, s4, 2", "s_and_b32 s6, s5, 3", f"s_add_u32 s{k1.s_ct}, s4, s6",
                           "s_cmp_lt_u32 s5, 16"]
    cfg['NS3'] = 4
    cfg['n_early'] = 33; cfg['n_final'] = 39
    return cfg

def build(cfg, name=NAME + "_kernel"):
    p = Prog()
    p(f".globl {name}")
    p(".p2align 8")
    p(f".type {name},@function")
    p(f"{name}:")
    p("s_cmp_ge_u32 s2, 256")
    p("s_cbranch_scc1 L_exit")
    k1.stamp(p, cfg, 0)
    if cfg.get('pf_code'):
        p("s_getpc_b64 s[72:73]")
        p("L_pc:")
        p("s_lshr_b32 s74, s2, 3")
        p(f"s_mul_i32 s74, s74, (L_code_end - {name} + 4095) / 4096")
        p("v_add_u32 v2, s74, v0")
        p("v_lshlrev_b32 v2, 7, v2")
        p(f"v_cmp_gt_u32 vcc, (L_code_end - {name} + 4095) / 4096, v0")
        p(f"s_mov_b32 s75, L_code_end - L_pc - 4")
        p("v_cmp_gt_u32 s[4:5], s75, v2")
        p("s_nop 3")
        p("s_and_b64 vcc, vcc, s[4:5]")
        p("s_and_saveexec_b64 s[4:5], vcc")
        p("s_cbranch_execz L_nopc")
        p("global_load_dword v32, v2, s[72:73]")
        p("L_nopc:")
        p("s_mov_b64 exec, s[4:5]")
    k1.ids(p)
    p.ext(cfg['map1'])
    p("s_cbranch_scc1 L_w1")
    k1.gen_qkv(p, cfg)
    k1.gen_w1(p, cfg)
    p("L_p3_entry:")
    p.ext(cfg['role'])
    p("s_cbranch_scc1 L_p3_final")
    k3.gen_phase3(p, 'early', cfg)
    p("L_p3_final:")
    k3.gen_phase3(p, 'final', cfg)
    p("L_fin:")
    k1.stamp_out(p, cfg, 0, k1.sWS, k1.s_w, "f")
    p("L_exit:")
    p("s_endpgm")
    p("L_code_end:")
    l, c = fix_hazards(p.L)
    out = HEADER
    out += "; @launch grid=(256,1,1) block=(256,1,1) lds=163840\n"
    out += '.amdgcn_target "amdgcn-amd-amdhsa--gfx950"\n.text\n'
    out += "\n".join(l) + "\n"
    out += '.section .rodata,"a"\n.p2align 6\n' + kd(name)
    return out, c

if __name__ == "__main__":
    cfg = default_cfg()
    for a in sys.argv[2:]:
        k, v = a.split("=", 1); cfg[k] = eval(v)
    if cfg.get('mix'): cfg['map1'] = cfg['map1_mix']
    txt, c = build(cfg)
    open(sys.argv[1], "w").write(txt)
    print("nops inserted", c, "bytes", len(txt))
```
